```python
import torch

def _softmax(x, axis=-1):
    return torch.softmax(x, dim=axis)
def _gelu(x):
    return torch.nn.functional.gelu(x, approximate="tanh")
def _silu(x):
    return torch.nn.functional.silu(x)
def _sigmoid(x):
    return torch.sigmoid(x)
def _layernorm(x, axis=-1, eps=1e-5):
    m = x.mean(dim=axis, keepdim=True)
    v = x.var(dim=axis, keepdim=True, unbiased=False)
    return (x - m) / torch.sqrt(v + eps)
def _scatter_add(tgt, idx, src, axis=0):
    return tgt.clone().index_add_(axis, idx, src)
def _segment_sum(src, seg, n):
    out = torch.zeros((n,) + src.shape[1:], dtype=src.dtype)
    return out.index_add_(0, seg, src)
def _pad(x, pw):
    flat = tuple(v for pair in reversed(pw) for v in pair)
    return torch.nn.functional.pad(x, flat)

kernel_name = 'recurrent_scan__sliding_block_cached__dense_activation_squared_relu__decode'

def setup_inputs():

    _w = (lambda a: (lambda t: t.to(torch.bfloat16) if t.is_floating_point() else t)(torch.as_tensor(a)))
    def _A_setup():
        B, Sq, D = 2, 1, 512
        Hq, Hkv, Sk, Dh = 32, 32, 4096, 128
        assert Hq % Hkv == 0, (Hq, Hkv)
        return {
            "x": _w((lambda *s: torch.randn(*s, dtype=torch.bfloat16) * 0.05)(B, Sq, D)),
            "k_cache": _w((lambda *s: torch.randn(*s, dtype=torch.bfloat16) * 0.8)(B, Hkv, Sk, Dh)),
            "v_cache": _w((lambda *s: torch.randn(*s, dtype=torch.bfloat16) * 0.2)(B, Hkv, Sk, Dh)),
            "wq": _w((lambda *s: torch.randn(*s, dtype=torch.bfloat16) * 0.8)(D, Hq * Dh) * (D ** -0.5)),
            "wo": _w((lambda *s: torch.randn(*s, dtype=torch.bfloat16) * 0.2)(Hq * Dh, D) * ((Hq * Dh) ** -0.5)),
        }
    _A_in = _A_setup()

    def _B_setup():
        B, S, D, F = 2, 1, 512, 1376
        return {
            "x": _w((lambda *s: torch.randn(*s, dtype=torch.bfloat16) * 0.05)(B, S, D)),
            "w1": _w((lambda *s: torch.randn(*s, dtype=torch.bfloat16) * 0.1)(D, F)),
            "b1": _w((lambda *s: torch.randn(*s, dtype=torch.bfloat16) * 0.8)(F)),
            "w2": _w((lambda *s: torch.randn(*s, dtype=torch.bfloat16) * 0.1)(F, D)),
            "b2": _w((lambda *s: torch.randn(*s, dtype=torch.bfloat16) * 6.4)(D)),
        }
    _B_in = _B_setup()

    return {
        "A_x": _A_in["x"],
        "A_k_cache": _A_in["k_cache"],
        "A_v_cache": _A_in["v_cache"],
        "A_wq": _A_in["wq"],
        "A_wo": _A_in["wo"],
        "B_x": _B_in["x"],
        "B_w1": _B_in["w1"],
        "B_b1": _B_in["b1"],
        "B_w2": _B_in["w2"],
        "B_b2": _B_in["b2"],
    }

def reference(A_x, A_k_cache, A_v_cache, A_wq, A_wo, B_x, B_w1, B_b1, B_w2, B_b2):
    def _A_ref(x, k_cache, v_cache, wq, wo):
        B, Sq, D = x.shape
        Hq, Dh = 32, 128
        Hkv, Sk = k_cache.shape[1], k_cache.shape[2]
        W = min(4096, max(256, Sk // 4))
        rep = Hq // Hkv
        q = (lambda x, *d: x.permute(*d))((x @ wq).reshape(B, Sq, Hq, Dh), 0, 2, 1, 3)
        k = (lambda x, n, axis: torch.repeat_interleave(x, n, dim=axis))(k_cache[:, :, Sk - W:, :], rep, axis=1)
        v = (lambda x, n, axis: torch.repeat_interleave(x, n, dim=axis))(v_cache[:, :, Sk - W:, :], rep, axis=1)
        scores = torch.einsum("bhqd,bhkd->bhqk", q, k) * (Dh ** -0.5)
        p = _softmax(scores, axis=-1)
        o = torch.einsum("bhqk,bhkd->bhqd", p, v)
        return (lambda x, *d: x.permute(*d))(o, 0, 2, 1, 3).reshape(B, Sq, Hq * Dh) @ wo

    def _B_ref(x, w1, b1, w2, b2):
        h = torch.einsum("bsd,df->bsf", x, w1) + b1
        zero = torch.zeros_like(h)
        r = torch.where(h > zero, h, zero)
        h = r * r
        out = torch.einsum("bsf,fd->bsd", h, w2) + b2
        return out

    x = A_x
    xn = _layernorm(x, axis=-1)
    s = _A_ref(xn, A_k_cache, A_v_cache, A_wq, A_wo)
    g = _silu(_B_ref(xn, B_w1, B_b1, B_w2, B_b2))
    return x + s * g
```

```python
import re
TRANS = ("v_exp_f32", "v_log_f32", "v_rcp_f32", "v_rsq_f32", "v_sqrt_f32", "v_sin_f32", "v_cos_f32")
REG_RE = re.compile(r"^(-|abs\()?([vsa])(\d+)\)?$")
RNG_RE = re.compile(r"^([vsa])\[(\d+):(\d+)\]$")

def regs_of(tok):
    tok = tok.strip()
    if tok in ("vcc", "exec"): return [tok]
    if tok in ("vcc_lo", "vcc_hi"): return ["vcc"]
    if tok in ("exec_lo", "exec_hi"): return ["exec"]
    m = REG_RE.match(tok)
    if m: return [m.group(2) + m.group(3)]
    m = RNG_RE.match(tok)
    if m: return [m.group(1) + str(i) for i in range(int(m.group(2)), int(m.group(3)) + 1)]
    return []

class Ins:
    def __init__(self, text):
        self.text = text
        body = text.split(";")[0].strip()
        parts = body.split(None, 1)
        self.op = parts[0]
        rest = parts[1] if len(parts) > 1 else ""
        ops, depth, cur = [], 0, ""
        for ch in rest:
            if ch in "[(": depth += 1
            if ch in "])": depth -= 1
            if ch == "," and depth == 0:
                ops.append(cur.strip()); cur = ""
            else: cur += ch
        if cur.strip(): ops.append(cur.strip())
        if ops:
            sp = ops[-1].split(None, 1)
            ops[-1] = sp[0]; self.mods = sp[1] if len(sp) > 1 else ""
        else: self.mods = ""
        self.ops = ops
        op = self.op
        self.is_mfma = op.startswith("v_mfma")
        self.is_valu = op.startswith("v_") and not self.is_mfma
        self.is_vmem = op.startswith(("global_", "buffer_", "flat_"))
        self.is_ds = op.startswith("ds_")
        self.is_dpp = "_dpp" in op
        self.is_trans = op.replace("_e32", "").replace("_e64", "") in TRANS
        self.is_perml = op.startswith("v_permlane")
        self.is_rdl = op.startswith(("v_readlane", "v_readfirstlane"))
        self.is_branch = op.startswith(("s_cbranch", "s_branch"))
        R = [regs_of(o) for o in ops]
        self.w, self.r = set(), set()
        self.store_data = set()
        if self.is_mfma:
            self.w |= set(R[0]); self.A = set(R[1]); self.B = set(R[2]); self.C = set(R[3]); self.D = set(R[0])
            self.r |= self.A | self.B | self.C
        elif self.is_valu:
            if self.is_perml:
                self.w |= set(R[0]) | set(R[1]); self.r |= self.w
            else:
                self.w |= set(R[0])
                start = 1
                if "_co_" in op: self.w |= set(R[1]); start = 2
                for x in R[start:]: self.r |= set(x)
                if self.is_dpp or op.startswith(("v_fmac", "v_dot2c", "v_writelane")): self.r |= set(R[0])
                if op.startswith("v_cndmask") and len(ops) == 3: self.r.add("vcc")
        elif self.is_vmem:
            if "load" in op:
                self.w |= set(R[0])
                for x in R[1:]: self.r |= set(x)
                if "d16" in op: self.r |= set(R[0])
            elif "store" in op:
                for x in R: self.r |= set(x)
                if "x3" in op or "x4" in op:
                    self.store_data = set(R[1]) if op.startswith("global") else set(R[0])
            else:
                for x in R: self.r |= set(x)
        elif self.is_ds:
            if "read" in op or "rtn" in op or "permute" in op or "swizzle" in op:
                self.w |= set(R[0])
                for x in R[1:]: self.r |= set(x)
            else:
                for x in R: self.r |= set(x)
        else:
            if op.startswith(("s_cmp", "s_cbranch", "s_branch", "s_waitcnt", "s_nop", "s_barrier", "s_sleep", "s_setprio", "s_endpgm", "s_bitcmp")):
                for x in R: self.r |= set(x)
            else:
                if R: self.w |= set(R[0])
                for x in R[1:]: self.r |= set(x)
    def states(self):
        if self.op == "s_nop": return int(self.ops[0], 0) + 1
        return 1

def need(p, c):
    n = 0
    pv = {x for x in p.w if x[0] in "va"}
    ps = {x for x in p.w if x[0] == "s" or x == "vcc"}
    if p.is_valu:
        if c.is_dpp and pv & c.r: n = max(n, 2)
        if c.is_mfma and pv & c.r: n = max(n, 2)
        if c.is_perml and pv & c.r: n = max(n, 2)
        if c.is_rdl and pv & c.r: n = max(n, 1)
        if p.is_trans and (c.is_valu or c.is_mfma) and pv & c.r: n = max(n, 1)
        if ps & c.r:
            if c.is_valu: n = max(n, 4 if (c.is_rdl or c.op.startswith("v_writelane")) else 2)
            if c.is_vmem: n = max(n, 5)
            if not (c.is_valu or c.is_vmem or c.is_mfma or c.is_ds): n = max(n, 1)
        if "exec" in p.w: n = max(n, 5)
        if p.op.startswith("v_dot") and pv & (c.r | c.w):
            same_c = c.op == p.op and len(c.ops) == 4 and not (pv & (set(regs_of(c.ops[1])) | set(regs_of(c.ops[2]))))
            if not same_c: n = max(n, 3)
    if p.is_mfma:
        if c.is_mfma:
            if p.D & (c.A | c.B): n = max(n, 8)
            if p.D & c.C and p.D != c.C: n = max(n, 6)
            if p.D & c.D and p.D != c.C: n = max(n, 8)
        elif (c.is_valu or c.is_vmem or c.is_ds) and p.D & (c.r | c.w): n = max(n, 8)
        if c.is_valu and p.C & c.w: n = max(n, 3)
    if p.store_data and (p.store_data & c.w):
        n = max(n, 2)
    return n

class Asm:
    def __init__(self):
        self.items = []
    def e(self, text):
        for line in text.strip().split("\n"):
            line = line.strip()
            if not line or line.startswith(";"): continue
            if line.endswith(":"): self.items.append(("l", line[:-1]))
            elif line.startswith("."): self.items.append(("raw", line))
            else: self.items.append(("i", Ins(line)))
    def label(self, n): self.items.append(("l", n))
    def finalize(self):
        WIN = 10
        at_branch = {}
        for it in range(3):
            out, hists = [], [[]]
            new_at = {}
            dead = False
            for kind, x in self.items:
                if kind == "l":
                    inc = [list(h) for h in at_branch.get(x, [])] + [list(h) for h in new_at.get(x, [])]
                    hists = ([] if dead else hists) + inc
                    if not hists: hists = [[]]
                    dead = False
                    out.append(x + ":"); continue
                if kind == "raw":
                    out.append(x); continue
                n = 0
                for h in hists:
                    for p, age in h:
                        n = max(n, need(p, x) - age)
                if n > 0:
                    out.append(f"s_nop {n-1}")
                    hists = [[(p, a + n) for p, a in h] for h in hists]
                out.append(x.text)
                st = x.states()
                merged = {}
                for h in hists:
                    for p, a in h:
                        if a + st <= WIN:
                            merged[id(p)] = (p, min(a + st, merged.get(id(p), (p, 99))[1]))
                hists = [list(merged.values()) + [(x, 0)]]
                if x.is_branch:
                    new_at.setdefault(x.ops[0], []).append(list(hists[0]))
                    if x.op == "s_branch": dead = True
                if x.op == "s_endpgm": dead = True
            at_branch = new_at
        return out
```

```python
import sys, argparse
from asmlib import Asm
NAME = "recurrent_scan__sliding_block_cached__dense_activation_squared_relu__decode"
HDR = open("cdna_kernels/" + NAME + ".s.ref").read().split("; Override launch")[0]

EP, QP, ST, OP, YP, FP, OPA = 0x0, 0x10000, 0x70000, 0x80000, 0x100000, 0x140000, 0x180000
STAMP = 0x800000
FULL = "row_mask:0xf bank_mask:0xf"
LOG2E = 1.4426950408889634
import struct
def f32(x): return "0x%08x" % struct.unpack("<I", struct.pack("<f", x))[0]

def gen(stamps=False, prefetch=True, fast=False, defer_wo=True):
    a = Asm(); e = a.e
    nst = [0]
    def stamp(i):
        if stamps: e(f"s_memrealtime s[{64+2*i}:{65+2*i}]")
    def xrow(op, v, t):
        e(f"v_mov_b32 v{t}, v{v}"); e(f"v_permlane16_swap_b32 v{v}, v{t}"); e(f"{op} v{v}, v{v}, v{t}")
        e(f"v_mov_b32 v{t}, v{v}"); e(f"v_permlane32_swap_b32 v{v}, v{t}"); e(f"{op} v{v}, v{v}, v{t}")
    def red8(op, regs):
        for ctl in ("quad_perm:[1,0,3,2]", "quad_perm:[2,3,0,1]", "row_half_mirror"):
            for v in regs: e(f"{op}_dpp v{v}, v{v}, v{v} {ctl} {FULL}")
    def masks(M, t0, t1):
        e(f"v_and_b32 v{t0}, 1, v0"); e(f"v_lshlrev_b32 v{t0}, 4, v{t0}")
        e(f"v_mov_b32 v{t1}, 0xffff"); e(f"v_lshlrev_b32 v{t0}, v{t0}, v{t1}")
        e(f"v_bfe_u32 v{t1}, v0, 1, 2")
        for r in range(4):
            e(f"v_cmp_eq_u32 vcc, {r}, v{t1}"); e(f"v_cndmask_b32 v{M+r}, 0, v{t0}, vcc")
    def tags():
        e("s_mul_i32 s42, s11, 0x9E3779B1"); e("s_add_u32 s42, s42, 0x7F4A7C15")
        e("s_and_b32 s12, s42, 0xff"); e("s_bfe_u32 s13, s42, 0x80008"); e("s_bfe_u32 s14, s42, 0x80010"); e("s_lshr_b32 s15, s42, 24")
    def tag4(D, S, vff):
        for r in range(4): e(f"v_bfi_b32 v{D+r}, v{vff}, s{12+r}, v{S+r}")
    def poll(lbl, loads, grans, acc, vz):
        e(f"s_mov_b32 s43, 0x4000")
        a.label(lbl)
        for l in loads: e(l)
        e("s_sub_u32 s43, s43, 1"); e("s_cbranch_scc1 L_end")
        e("s_waitcnt vmcnt(0)")
        allr = []
        for G in grans:
            for r in range(4): e(f"v_xor_b32 v{G+r}, s{12+r}, v{G+r}"); allr.append(G + r)
        e(f"v_or3_b32 v{acc}, v{allr[0]}, v{allr[1]}, v{allr[2]}")
        rest = allr[3:]
        while len(rest) >= 2:
            e(f"v_or3_b32 v{acc}, v{acc}, v{rest[0]}, v{rest[1]}"); rest = rest[2:]
        if rest: e(f"v_or_b32 v{acc}, v{acc}, v{rest[0]}")
        e(f"v_cmp_ne_u32_sdwa vcc, v{acc}, v{vz} src0_sel:BYTE_0 src1_sel:DWORD")
        e(f"s_cbranch_vccnz {lbl}")
    def ldswait(lbl, off, val, vz, vt):
        e("s_mov_b32 s43, 0x40000")
        a.label(lbl)
        e(f"ds_read_b32 v{vt}, v{vz} offset:{off}")
        e("s_sub_u32 s43, s43, 1"); e("s_cbranch_scc1 L_end")
        e("s_waitcnt lgkmcnt(0)")
        e(f"v_readfirstlane_b32 s48, v{vt}")
        e(f"s_cmp_eq_u32 s48, {val}")
        e(f"s_cbranch_scc1 {lbl}_ok")
        e("s_sleep 1")
        e(f"s_branch {lbl}")
        a.label(lbl + "_ok")
    def ldsinc(off, vz, vone):
        e("s_mov_b64 exec, 1"); e(f"ds_add_u32 v{vz}, v{vone} offset:{off}"); e("s_mov_b64 exec, -1")
    def red64(G, t):
        e(f"v_permlane32_swap_b32 v{G}, v{G+1}"); e(f"v_permlane32_swap_b32 v{G+2}, v{G+3}")
        e(f"v_add_f32 v{G}, v{G}, v{G+1}"); e(f"v_add_f32 v{G+2}, v{G+2}, v{G+3}")
        e(f"v_permlane16_swap_b32 v{G}, v{G+2}"); e(f"v_add_f32 v{G}, v{G}, v{G+2}")
        for n in (8, 4, 2, 1): e(f"v_add_f32_dpp v{G}, v{G}, v{G} row_ror:{n} {FULL}")

    stamp(0)
    e("s_cmp_ge_u32 s2, 256"); e("s_cbranch_scc1 L_exit")
    e("s_load_dwordx16 s[16:31], s[0:1], 0")
    e("s_load_dwordx8 s[32:39], s[0:1], 64")
    e("s_load_dwordx2 s[40:41], s[0:1], 96")
    e("v_lshrrev_b32 v1, 6, v0"); e("v_and_b32 v0, 63, v0")
    e("v_readfirstlane_b32 s3, v1")
    e("s_and_b32 s49, s2, 7"); e("s_lshr_b32 s50, s2, 3")
    e("s_lshl_b32 s4, s49, 2"); e("s_lshr_b32 s5, s50, 3"); e("s_add_u32 s4, s4, s5")
    e("s_and_b32 s5, s50, 7")
    e("s_lshr_b32 s6, s5, 2"); e("s_and_b32 s7, s5, 3")
    e("s_and_b32 s8, s5, 1"); e("s_lshr_b32 s9, s5, 1")
    e("s_lshl_b32 s10, s4, 1"); e("s_add_u32 s10, s10, s8")
    e("v_and_b32 v2, 15, v0"); e("v_lshrrev_b32 v3, 4, v0")
    e("v_mov_b32 v4, 0"); e("v_mov_b32 v5, 1"); e("v_mov_b32 v6, 0"); e("v_mov_b32 v7, 0")
    e("s_cmp_ge_u32 s3, 4"); e("s_cbranch_scc1 L_P")

    K0, V0, BQ, DD, SS, MM, OO = 8, 72, 136, 152, 168, 172, 176
    vK, vV, vT0, vT1, vB2, vX, vFF, vOc, vT2, vT3 = 180, 181, 182, 183, 184, 185, 186, 187, 188, 189
    G2 = 192
    e("ds_write_b64 v4, v[6:7]"); e("ds_write_b32 v4, v4 offset:8")
    e(f"v_bfe_u32 v{vK}, v0, 2, 2"); e(f"v_lshlrev_b32 v{vK}, 8, v{vK}")
    e(f"v_lshl_add_u32 v{vK}, v3, 6, v{vK}"); e(f"v_and_b32 v{vT0}, 3, v0"); e(f"v_lshl_add_u32 v{vK}, v{vT0}, 4, v{vK}")
    e(f"v_lshlrev_b32 v{vV}, 4, v0")
    e("s_lshl_b32 s48, s6, 5"); e("s_add_u32 s48, s48, s4"); e("s_lshl_b32 s48, s48, 20")
    e("s_lshl_b32 s49, s7, 16"); e("s_add_u32 s48, s48, s49"); e("s_lshl_b32 s49, s3, 14"); e("s_add_u32 s48, s48, s49")
    e("s_add_u32 s48, s48, 0xC1000")
    e(f"v_and_b32 v{vOc}, 1, v3"); e(f"v_lshrrev_b32 v{vT0}, 1, v3"); e(f"v_lshl_or_b32 v{vOc}, v{vOc}, 1, v{vT0}")
    e("s_and_b32 s51, s10, 31"); e("s_lshl_b32 s51, s51, 2"); e("s_lshl_b32 s52, s9, 7"); e("s_add_u32 s51, s51, s52")
    e(f"v_add_lshl_u32 v{vOc}, v{vOc}, s51, 1")
    e("s_lshr_b32 s51, s10, 5"); e("s_lshl_b32 s51, s51, 10")
    e(f"v_add_u32 v{vT1}, s51, v{vOc}")
    e("s_waitcnt lgkmcnt(0)")
    e("s_load_dword s11, s[40:41], 0")
    e("s_add_u32 s18, s18, s48"); e("s_addc_u32 s19, s19, 0"); e("s_add_u32 s20, s20, s48"); e("s_addc_u32 s21, s21, 0")
    e("s_add_u32 s52, s18, 0x2000"); e("s_addc_u32 s53, s19, 0"); e("s_add_u32 s54, s20, 0x2000"); e("s_addc_u32 s55, s21, 0")
    e("s_barrier")
    for t in range(16):
        e(f"global_load_dwordx4 v[{K0+4*t}:{K0+4*t+3}], v{vK}, s[{18 if t<8 else 52}:{19 if t<8 else 53}] offset:{(t%8)*1024-4096} nt")
    for t in range(16):
        e(f"global_load_dwordx4 v[{V0+4*t}:{V0+4*t+3}], v{vV}, s[{20 if t<8 else 54}:{21 if t<8 else 55}] offset:{(t%8)*1024-4096} nt")
    ldsinc(4, 4, 5)
    e(f"global_load_ushort v{vB2}, v{vOc}, s[34:35]")
    e(f"global_load_ushort v{vX}, v{vT1}, s[16:17]")
    e(f"global_load_ushort v{vT2}, v{vT1}, s[36:37]")
    NS = 3
    stamp(1)
    for r in range(16): e(f"v_mov_b32 v{BQ+r}, 0")
    masks(MM, vT0, vT3)
    e(f"v_mov_b32 v{vFF}, 0xff")
    e(f"v_and_b32 v{vT0}, 3, v0"); e(f"v_lshl_add_u32 v{vT0}, v3, 2, v{vT0}"); e(f"v_lshlrev_b32 v{vK}, 4, v{vT0}")
    ldswait("L_sq", 0, 4, 4, vT0)
    tags()
    stamp(2)
    for t in range(4):
        e(f"s_mov_b32 exec_lo, 0x{0x000F000F << (4*t):08x}"); e("s_mov_b32 exec_hi, exec_lo")
        e(f"ds_read_b128 v[{BQ+4*t}:{BQ+4*t+3}], v{vK} offset:64")
    e("s_mov_b64 exec, -1")
    e(f"s_waitcnt vmcnt({16+NS}) lgkmcnt(0)")
    stamp(3)
    for t in range(4):
        for c in range(4):
            k = K0 + 4 * (4 * c + t); d = DD + 4 * c
            e(f"v_mfma_f32_16x16x32_bf16 v[{d}:{d+3}], v[{k}:{k+3}], v[{BQ+4*t}:{BQ+4*t+3}], " + ("0" if t == 0 else f"v[{d}:{d+3}]"))
    for c in range(4): e(f"v_mov_b32_dpp v{SS+c}, v{DD+4*c} quad_perm:[0,0,0,0] {FULL}")
    for r in range(1, 4):
        for c in range(4): e(f"v_add_f32_dpp v{SS+c}, v{DD+4*c+r}, v{SS+c} quad_perm:[{r},{r},{r},{r}] {FULL}")
    vM, vL = DD, DD + 1
    e(f"v_max3_f32 v{vM}, v{SS}, v{SS+1}, v{SS+2}"); e(f"v_max_f32 v{vM}, v{vM}, v{SS+3}")
    e(f"v_max_f32_dpp v{vM}, v{vM}, v{vM} row_ror:4 {FULL}"); e(f"v_max_f32_dpp v{vM}, v{vM}, v{vM} row_ror:8 {FULL}")
    xrow("v_max_f32", vM, vT0)
    e(f"s_mov_b32 s48, {f32(LOG2E * 128 ** -0.5)}")
    e(f"v_mul_f32 v{vM}, s48, v{vM}")
    for c in range(4): e(f"v_fma_f32 v{SS+c}, v{SS+c}, s48, -v{vM}")
    for c in range(4): e(f"v_exp_f32 v{SS+c}, v{SS+c}")
    e(f"v_add_f32 v{vL}, v{SS}, v{SS+1}"); e(f"v_add_f32 v{vT0}, v{SS+2}, v{SS+3}"); e(f"v_add_f32 v{vL}, v{vL}, v{vT0}")
    for c in range(4): e(f"v_cvt_pk_bf16_f32 v{SS+c}, v{SS+c}, v{SS+c}")
    e(f"v_add_f32_dpp v{vL}, v{vL}, v{vL} row_ror:4 {FULL}"); e(f"v_add_f32_dpp v{vL}, v{vL}, v{vL} row_ror:8 {FULL}")
    xrow("v_add_f32", vL, vT0)
    e("s_lshl_b32 s56, s4, 1"); e("s_add_u32 s56, s56, s6"); e("s_lshl_b32 s56, s56, 2"); e("s_add_u32 s56, s56, s7")
    e("s_lshl_b32 s56, s56, 2"); e("s_add_u32 s56, s56, s3")
    e("s_lshl_b32 s57, s56, 4"); e(f"s_add_u32 s57, s57, {ST}")
    e(f"v_mov_b32 v{vT0}, s57")
    if fast:
        e("s_getreg_b32 s58, hwreg(HW_REG_XCC_ID)"); e(f"v_mov_b32 v{DD+2}, s58")
    else:
        e(f"v_mov_b32 v{DD+2}, s42")
    e(f"v_mov_b32 v{DD+3}, s42")
    e("s_mov_b64 exec, 1")
    e(f"global_store_dwordx4 v{vT0}, v[{DD}:{DD+3}], s[40:41] sc1")
    e("s_mov_b64 exec, -1")
    for t in range(16):
        for r in range(4):
            e(f"v_and_b32_dpp v{K0+4*t+r}, v{SS+t//4}, v{MM+r} row_newbcast:{4*(t%4)} {FULL}")
    e("s_lshl_b32 s57, s56, 9"); e(f"s_add_u32 s57, s57, {OP}")
    e(f"v_and_b32 v{vT0}, 1, v3"); e(f"v_lshl_add_u32 v{vT0}, v2, 1, v{vT0}"); e(f"v_lshlrev_b32 v{vT0}, 4, v{vT0}"); e(f"v_add_u32 v{vT0}, s57, v{vT0}")
    if fast: e(f"v_add_u32 v{vT3}, {OPA-OP}, v{vT0}")
    stamp(4)
    for t in range(16):
        e(f"s_waitcnt vmcnt({15-t+NS+1})")
        e(f"v_mfma_f32_16x16x32_bf16 v[{OO}:{OO+3}], v[{K0+4*t}:{K0+4*t+3}], v[{V0+4*t}:{V0+4*t+3}], " + ("0" if t == 0 else f"v[{OO}:{OO+3}]"))
    e("s_mov_b32 exec_hi, 0")
    tag4(OO, OO, vFF)
    if fast: e(f"global_store_dwordx4 v{vT3}, v[{OO}:{OO+3}], s[40:41]")
    e(f"global_store_dwordx4 v{vT0}, v[{OO}:{OO+3}], s[40:41] sc1")
    e("s_mov_b64 exec, -1")
    stamp(5)
    e("s_cmp_lg_u32 s3, 0"); e("s_cbranch_scc1 L_end")
    e("s_lshl_b32 s48, s9, 16"); e("s_lshl_b32 s49, s10, 4"); e("s_add_u32 s48, s48, s49"); e(f"s_add_u32 s48, s48, {FP}")
    e(f"v_lshlrev_b32 v{vK}, 10, v0"); e(f"v_add_u32 v{vK}, s48, v{vK}"); e(f"v_add_u32 v{vV}, {YP-FP & 0xffffffff}, v{vK}")
    poll("L_pf", [f"global_load_dwordx4 v[{G2}:{G2+3}], v{vK}, s[40:41] sc1"], [G2], vT0, 4)
    red64(G2, vT0)
    e(f"v_lshlrev_b32 v{vB2}, 16, v{vB2}"); e(f"v_lshlrev_b32 v{vX}, 16, v{vX}")
    e(f"v_add_f32 v{vB2}, v{G2}, v{vB2}")
    e(f"v_mul_f32 v{vT0}, {f32(-LOG2E)}, v{vB2}"); e(f"v_exp_f32 v{vT0}, v{vT0}"); e(f"v_add_f32 v{vT0}, 1.0, v{vT0}")
    e(f"v_rcp_f32 v{vT0}, v{vT0}"); e(f"v_mul_f32 v{vB2}, v{vB2}, v{vT0}")
    stamp(6)
    poll("L_py", [f"global_load_dwordx4 v[{G2}:{G2+3}], v{vV}, s[40:41] sc1"], [G2], vT0, 4)
    red64(G2, vT0)
    e(f"v_fma_f32 v{G2}, v{G2}, v{vB2}, v{vX}")
    e(f"v_cvt_pk_bf16_f32 v{G2}, v{G2}, v{G2}")
    e("s_mov_b32 exec_lo, 0x00010001"); e("s_mov_b32 exec_hi, 0x00010001")
    e(f"global_store_short v{vT1}, v{G2}, s[36:37]")
    e("s_cmp_lg_u32 s2, 0"); e("s_cbranch_scc1 L_end")
    e("s_add_u32 s11, s11, 1"); e(f"v_mov_b32 v{vT0}, s11"); e("s_mov_b64 exec, 1")
    e(f"global_store_dword v4, v{vT0}, s[40:41] sc1")
    e("s_branch L_end")

    W0, A0, XS, XR, XF = 8, 72, 136, 144, 152
    PM, PD = 172, 176
    pT0, pT1, pT2, pT3, pGr, pFF, pB, pI, pOff = 180, 181, 182, 183, 184, 185, 186, 187, 188
    a.label("L_P")
    e("s_setprio 3")
    e(f"v_bfe_u32 v{pB}, v0, 3, 1"); e(f"v_and_b32 v{pI}, 7, v0")
    e("s_cmp_ge_u32 s3, 6"); e("s_cbranch_scc1 L_P23")
    e("s_lshl_b32 s51, s50, 2"); e("s_add_u32 s51, s51, s49")
    e("s_cmp_eq_u32 s3, 4")
    e("s_cbranch_scc1 L_tq")
    e("s_cmp_ge_u32 s49, 4"); e("s_cbranch_scc1 L_Pnone")
    e("s_cmp_ge_u32 s51, 88"); e("s_cbranch_scc1 L_Pnone")
    e("s_and_b32 s53, s51, 7"); e("s_lshr_b32 s54, s51, 3"); e("s_lshl_b32 s54, s54, 8"); e("s_add_u32 s55, s51, 256")
    e("s_waitcnt lgkmcnt(0)")
    e("s_mov_b32 s44, s28"); e("s_mov_b32 s45, s29"); e("s_movk_i32 s52, 2752"); e("s_mov_b32 s46, 1409024")
    e("s_branch L_tile")
    a.label("L_tq")
    e("s_mov_b32 s53, s5"); e("s_lshl_b32 s54, s4, 8"); e("s_lshl_b32 s55, s4, 3"); e("s_add_u32 s55, s55, s5")
    e("s_waitcnt lgkmcnt(0)")
    e("s_mov_b32 s44, s22"); e("s_mov_b32 s45, s23"); e("s_movk_i32 s52, 8192"); e("s_mov_b32 s46, 0x400000")
    a.label("L_tile")
    e("s_load_dword s11, s[40:41], 0")
    e("s_mov_b32 s47, 0x20000")
    e(f"v_lshl_add_u32 v{pT0}, v3, 3, v{pI}"); e(f"v_lshlrev_b32 v{pT0}, 5, v{pT0}"); e(f"v_lshl_add_u32 v{pT0}, v{pB}, 10, v{pT0}")
    e("s_lshl_b32 s56, s53, 7")
    e(f"v_lshlrev_b32 v{pT1}, 5, v3"); e(f"v_lshl_add_u32 v{pT1}, v{pB}, 10, v{pT1}"); e(f"v_add_u32 v{pT1}, s56, v{pT1}")
    e(f"global_load_dwordx4 v[{XS}:{XS+3}], v{pT0}, s[16:17]"); e(f"global_load_dwordx4 v[{XS+4}:{XS+7}], v{pT0}, s[16:17] offset:16")
    e(f"global_load_dwordx4 v[{XR}:{XR+3}], v{pT1}, s[16:17]"); e(f"global_load_dwordx4 v[{XR+4}:{XR+7}], v{pT1}, s[16:17] offset:16")
    e("s_lshl_b32 s56, s52, 4")
    e(f"v_lshlrev_b32 v{pT2}, 4, v2"); e(f"v_mad_u32_u24 v{pT2}, v3, s56, v{pT2}")
    e("s_mul_i32 s57, s53, s52"); e("s_lshl_b32 s57, s57, 6"); e("s_add_u32 s57, s57, s54")
    for u in range(16):
        e(f"buffer_load_dwordx4 v[{W0+4*u}:{W0+4*u+3}], v{pT2}, s[44:47], s57 offen nt")
        if u < 15: e("s_add_u32 s57, s57, s52")
    e("s_barrier")
    stamp(1)
    masks(PM, pT0, pT1)
    e(f"v_mov_b32 v{pT2}, 0x3f803f80")
    e("s_waitcnt vmcnt(18)")
    sS, sQ = pT0, pT1
    for r in range(8):
        e(f"v_dot2_f32_bf16 v{sS}, v{XS+r}, v{pT2}, " + ("0" if r == 0 else f"v{sS}"))
        e(f"v_dot2_f32_bf16 v{sQ}, v{XS+r}, v{XS+r}, " + ("0" if r == 0 else f"v{sQ}"))
    red8("v_add_f32", [sS, sQ])
    xrow("v_add_f32", sS, pT2); xrow("v_add_f32", sQ, pT3)
    e(f"v_mul_f32 v{sS}, {f32(1/512)}, v{sS}")
    e(f"v_mul_f32 v{pT2}, v{sS}, v{sS}")
    e(f"s_mov_b32 s56, {f32(1/512)}")
    e(f"v_fma_f32 v{sQ}, v{sQ}, s56, -v{pT2}"); e(f"v_max_f32 v{sQ}, 0, v{sQ}")
    e(f"v_cvt_pk_bf16_f32 v{pT2}, v{sS}, v{sQ}")
    e(f"v_lshlrev_b32 v{sS}, 16, v{pT2}"); e(f"v_and_b32 v{sQ}, 0xffff0000, v{pT2}")
    e(f"v_add_f32 v{sQ}, {f32(1e-5)}, v{sQ}"); e(f"v_cvt_pk_bf16_f32 v{sQ}, v{sQ}, v{sQ}"); e(f"v_lshlrev_b32 v{sQ}, 16, v{sQ}")
    e(f"v_sqrt_f32 v{sQ}, v{sQ}"); e(f"v_cvt_pk_bf16_f32 v{sQ}, v{sQ}, v{sQ}"); e(f"v_lshlrev_b32 v{sQ}, 16, v{sQ}")
    e(f"v_rcp_f32 v{sQ}, v{sQ}")
    e("s_waitcnt vmcnt(16)")
    for r in range(8):
        e(f"v_lshlrev_b32 v{XF+2*r}, 16, v{XR+r}"); e(f"v_and_b32 v{XF+2*r+1}, 0xffff0000, v{XR+r}")
    for u in range(16): e(f"v_sub_f32 v{XF+u}, v{XF+u}, v{sS}")
    for u in range(16): e(f"v_mul_f32 v{XF+u}, v{XF+u}, v{sQ}")
    for u in range(16): e(f"v_cvt_pk_bf16_f32 v{XF+u}, v{XF+u}, v{XF+u}")
    for u in range(16):
        for r in range(4): e(f"v_and_b32 v{A0+4*u+r}, v{XF+u}, v{PM+r}")
    e("s_waitcnt lgkmcnt(0)")
    tags()
    ldsinc(0, 4, 5)
    e(f"v_mov_b32 v{pFF}, 0xff")
    e(f"v_lshrrev_b32 v{pGr}, 1, v3"); e(f"v_lshlrev_b32 v{pGr}, 9, v{pGr}"); e(f"v_lshl_add_u32 v{pGr}, v2, 5, v{pGr}")
    e(f"v_and_b32 v{pT0}, 1, v3"); e(f"v_lshl_add_u32 v{pGr}, v{pT0}, 4, v{pGr}")
    e("s_lshl_b32 s55, s55, 10"); e(f"s_add_u32 s55, s55, {QP}"); e(f"v_add_u32 v{pT0}, s55, v{pGr}")
    stamp(2)
    for u in range(16):
        e(f"s_waitcnt vmcnt({15-u})")
        e(f"v_mfma_f32_16x16x32_bf16 v[{PD}:{PD+3}], v[{A0+4*u}:{A0+4*u+3}], v[{W0+4*u}:{W0+4*u+3}], " + ("0" if u == 0 else f"v[{PD}:{PD+3}]"))
    tag4(PD, PD, pFF)
    e(f"global_store_dwordx4 v{pT0}, v[{PD}:{PD+3}], s[40:41] sc1")
    e("s_branch L_wo")

    def pcommon():
        e("s_waitcnt lgkmcnt(0)")
        e("s_load_dword s11, s[40:41], 0")
    def pcommon2():
        masks(PM, pT0, pT1)
        e(f"v_mov_b32 v{pFF}, 0xff")
        e(f"v_lshrrev_b32 v{pGr}, 1, v3"); e(f"v_lshlrev_b32 v{pGr}, 9, v{pGr}"); e(f"v_lshl_add_u32 v{pGr}, v2, 5, v{pGr}")
        e(f"v_and_b32 v{pT0}, 1, v3"); e(f"v_lshl_add_u32 v{pGr}, v{pT0}, 4, v{pGr}")
        e("s_waitcnt lgkmcnt(0)")
        tags()

    a.label("L_Pnone")
    pcommon(); e("s_barrier"); pcommon2(); ldsinc(0, 4, 5)
    e("s_branch L_wo")

    a.label("L_P23")
    e("s_cmp_eq_u32 s3, 7"); e("s_cbranch_scc1 L_P3")
    if prefetch:
        e("s_getpc_b64 s[58:59]")
        a.label("L_pc")
        e(f"s_sub_u32 s58, s58, L_pc-{NAME}_kernel"); e("s_subb_u32 s59, s59, 0")
        e(f"v_lshlrev_b32 v{pT3}, 7, v0")
        e(f"v_min_u32 v{pT3}, L_last-{NAME}_kernel, v{pT3}")
        e(f"global_load_dword v{pT2}, v{pT3}, s[58:59]")
    pcommon(); e("s_barrier"); pcommon2()
    e("s_lshl_b32 s52, s4, 13"); e("s_lshl_b32 s53, s6, 9"); e("s_add_u32 s52, s52, s53"); e(f"s_add_u32 s52, s52, {QP}")
    e(f"v_lshrrev_b32 v{pOff}, 2, v2"); e(f"v_lshlrev_b32 v{pOff}, 11, v{pOff}"); e(f"v_lshl_add_u32 v{pOff}, v3, 7, v{pOff}")
    e(f"v_and_b32 v{pT0}, 3, v0"); e(f"v_lshl_add_u32 v{pOff}, v{pT0}, 5, v{pOff}"); e(f"v_add_u32 v{pOff}, s52, v{pOff}")
    e(f"v_lshl_add_u32 v{pT3}, v3, 2, v{pT0}"); e(f"v_lshlrev_b32 v{pT3}, 4, v{pT3}")
    stamp(1)
    poll("L_pq", [f"global_load_dwordx4 v[{W0+4*i}:{W0+4*i+3}], v{pOff}, s[40:41] offset:{o} sc1" for i, o in enumerate((0, 16, 1024, 1040))],
         [W0, W0 + 4, W0 + 8, W0 + 12], pT0, 4)
    for r in range(8): e(f"v_add_f32 v{W0+r}, v{W0+r}, v{W0+8+r}")
    for n in (4, 8):
        for r in range(8): e(f"v_add_f32_dpp v{W0+r}, v{W0+r}, v{W0+r} row_ror:{n} {FULL}")
    for r in range(4): e(f"v_cvt_pk_bf16_f32 v{W0+8+r}, v{W0+2*r}, v{W0+2*r+1}")
    e(f"ds_write_b128 v{pT3}, v[{W0+8}:{W0+11}] offset:64")
    ldsinc(0, 4, 5)
    stamp(2)
    e("s_branch L_wo")

    a.label("L_P3")
    pcommon()
    e("s_lshl_b32 s52, s10, 14"); e("s_lshl_b32 s53, s9, 8"); e("s_add_u32 s52, s52, s53")
    e(f"v_lshlrev_b32 v{pT2}, 12, v3"); e(f"v_lshl_add_u32 v{pT2}, v2, 4, v{pT2}"); e(f"v_add_u32 v{pT2}, s52, v{pT2}")
    e("s_lshl_b32 s52, s10, 5"); e(f"v_lshlrev_b32 v{pT3}, 3, v3"); e(f"v_add_u32 v{pT3}, s52, v{pT3}")
    e("s_barrier")
    B1 = XS
    for u in range(4): e(f"global_load_dwordx4 v[{W0+4*u}:{W0+4*u+3}], v{pT2}, s[32:33] offset:{1024*u} nt")
    e(f"global_load_dwordx2 v[{B1}:{B1+1}], v{pT3}, s[30:31]")
    e("s_cmp_ge_u32 s10, 22"); e("s_cbranch_scc1 L_f1")
    e(f"v_add_u32 v{pT2}, 0x100000, v{pT2}")
    for u in range(4): e(f"global_load_dwordx4 v[{W0+16+4*u}:{W0+16+4*u+3}], v{pT2}, s[32:33] offset:{1024*u} nt")
    e(f"global_load_dwordx2 v[{B1+2}:{B1+3}], v{pT3}, s[30:31] offset:2048")
    a.label("L_f1")
    pcommon2(); ldsinc(0, 4, 5)
    e("s_lshr_b32 s52, s10, 3"); e("s_lshl_b32 s52, s52, 13"); e("s_and_b32 s53, s10, 7"); e("s_lshl_b32 s53, s53, 6")
    e("s_add_u32 s52, s52, s53"); e(f"s_add_u32 s52, s52, {QP + 256*1024}")
    e(f"v_lshlrev_b32 v{pOff}, 10, v{pI}"); e(f"v_lshl_add_u32 v{pOff}, v{pB}, 9, v{pOff}"); e(f"v_lshl_add_u32 v{pOff}, v3, 4, v{pOff}")
    e(f"v_add_u32 v{pOff}, s52, v{pOff}")
    stamp(1)
    def ffn2(unit):
        H = XF
        poll(f"L_ph{unit}", [f"global_load_dwordx4 v[{H}:{H+3}], v{pOff}, s[40:41] sc1"], [H], pT0, 4)
        red8("v_add_f32", [H, H + 1, H + 2, H + 3])
        b = B1 + 2 * unit
        e(f"v_lshlrev_b32 v{H+4}, 16, v{b}"); e(f"v_and_b32 v{H+5}, 0xffff0000, v{b}")
        e(f"v_lshlrev_b32 v{H+6}, 16, v{b+1}"); e(f"v_and_b32 v{H+7}, 0xffff0000, v{b+1}")
        for u in range(4): e(f"v_add_f32 v{H+u}, v{H+u}, v{H+4+u}")
        for u in range(4): e(f"v_max_f32 v{H+u}, 0, v{H+u}")
        for u in range(4): e(f"v_mul_f32 v{H+u}, v{H+u}, v{H+u}")
        for u in range(4): e(f"v_cvt_pk_bf16_f32 v{H+u}, v{H+u}, v{H+u}")
        for u in range(4):
            for r in range(4): e(f"v_and_b32 v{A0+4*u+r}, v{H+u}, v{PM+r}")
        for u in range(4):
            w = W0 + 16 * unit + 4 * u
            e(f"v_mfma_f32_16x16x32_bf16 v[{PD}:{PD+3}], v[{A0+4*u}:{A0+4*u+3}], v[{w}:{w+3}], " + ("0" if (u == 0 and unit == 0) else f"v[{PD}:{PD+3}]"))
    ffn2(0)
    e("s_cmp_ge_u32 s10, 22"); e("s_cbranch_scc1 L_f2")
    e(f"v_add_u32 v{pOff}, 0x10000, v{pOff}")
    ffn2(1)
    a.label("L_f2")
    e("s_lshl_b32 s52, s9, 6"); e("s_add_u32 s52, s52, s10"); e("s_lshl_b32 s52, s52, 10"); e(f"s_add_u32 s52, s52, {FP}")
    e(f"v_add_u32 v{pT0}, s52, v{pGr}")
    tag4(PD, PD, pFF)
    e(f"global_store_dwordx4 v{pT0}, v[{PD}:{PD+3}], s[40:41] sc1")
    stamp(2)

    a.label("L_wo")
    e("s_sub_u32 s51, s3, 4")
    e("s_lshl_b32 s52, s10, 16"); e("s_lshl_b32 s53, s51, 14"); e("s_add_u32 s52, s52, s53"); e("s_lshl_b32 s53, s9, 8"); e("s_add_u32 s52, s52, s53")
    e(f"v_lshlrev_b32 v{pT2}, 12, v3"); e(f"v_lshl_add_u32 v{pT2}, v2, 4, v{pT2}"); e(f"v_add_u32 v{pT2}, s52, v{pT2}")
    e(f"v_lshl_add_u32 v{pT3}, v{pB}, 4, v{pI}"); e("s_lshl_b32 s52, s4, 5"); e(f"v_add_u32 v{pT3}, s52, v{pT3}")
    e("s_lshl_b32 s52, s8, 2"); e("s_add_u32 s52, s52, s51"); e("s_lshl_b32 s52, s52, 6"); e(f"s_add_u32 s52, s52, {OP + 4096}")
    e(f"v_lshlrev_b32 v{pOff}, 9, v{pT3}"); e(f"v_lshl_add_u32 v{pOff}, v3, 4, v{pOff}"); e(f"v_add_u32 v{pOff}, s52, v{pOff}")
    e(f"v_lshlrev_b32 v{pT3}, 4, v{pT3}"); e(f"v_add_u32 v{pT3}, {ST}, v{pT3}")
    if defer_wo: ldswait("L_pv", 4, 4, 4, pT0)
    WO = 40
    for u in range(4): e(f"global_load_dwordx4 v[{WO+4*u}:{WO+4*u+3}], v{pT2}, s[24:25] offset:{1024*u} nt")
    stamp(3)
    S1, S2 = XF, XF + 4
    e("s_mov_b32 s43, 0x4000")
    a.label("L_ps")
    e(f"global_load_dwordx4 v[{S1}:{S1+3}], v{pT3}, s[40:41] sc1"); e(f"global_load_dwordx4 v[{S2}:{S2+3}], v{pT3}, s[40:41] offset:128 sc1")
    e("s_sub_u32 s43, s43, 1"); e("s_cbranch_scc1 L_end")
    e("s_waitcnt vmcnt(0)")
    e(f"v_xor_b32 v{pT0}, s42, v{S1+3}"); e(f"v_xor_b32 v{pT1}, s42, v{S2+3}"); e(f"v_or_b32 v{pT0}, v{pT0}, v{pT1}")
    e(f"v_cmp_ne_u32 vcc, 0, v{pT0}"); e("s_cbranch_vccnz L_ps")
    stamp(4)
    O1, O2 = XS, XS + 4
    pOff2 = 189
    if fast:
        e("s_getreg_b32 s58, hwreg(HW_REG_XCC_ID)")
        e(f"v_add_u32 v{pT0}, {OPA-OP}, v{pOff}")
        e(f"v_cmp_eq_u32 vcc, s58, v{S2+2}"); e(f"v_cndmask_b32 v{pOff2}, v{pOff}, v{pT0}, vcc")
        e(f"v_cmp_eq_u32 vcc, s58, v{S1+2}"); e(f"v_cndmask_b32 v{pOff}, v{pOff}, v{pT0}, vcc")
    else:
        e(f"v_mov_b32 v{pOff2}, v{pOff}")
    e(f"v_max_f32 v{pT0}, v{S1}, v{S2}"); red8("v_max_f32", [pT0])
    e(f"v_sub_f32 v{S1}, v{S1}, v{pT0}"); e(f"v_sub_f32 v{S2}, v{S2}, v{pT0}")
    e(f"v_exp_f32 v{S1}, v{S1}"); e(f"v_exp_f32 v{S2}, v{S2}")
    e(f"v_mul_f32 v{pT0}, v{S1}, v{S1+1}"); e(f"v_fmac_f32 v{pT0}, v{S2}, v{S2+1}"); red8("v_add_f32", [pT0])
    e(f"v_rcp_f32 v{pT0}, v{pT0}")
    e(f"v_mul_f32 v{S1}, v{S1}, v{pT0}"); e(f"v_mul_f32 v{S2}, v{S2}, v{pT0}")
    e("s_lshl_b32 s52, s51, 10"); e(f"v_lshlrev_b32 v{pT3}, 4, v0"); e(f"v_add_u32 v{pT2}, s52, v{pT3}")
    e("s_lshl_b32 s52, s9, 6"); e("s_add_u32 s52, s52, s10"); e("s_lshl_b32 s52, s52, 10"); e(f"s_add_u32 s52, s52, {YP}")
    e(f"v_add_u32 v{pGr}, s52, v{pGr}")
    poll("L_po", [f"global_load_dwordx4 v[{O1}:{O1+3}], v{pOff}, s[40:41] offset:-4096 sc1", f"global_load_dwordx4 v[{O2}:{O2+3}], v{pOff2}, s[40:41] sc1"],
         [O1, O2], pT0, 4)
    stamp(5)
    for u in range(4): e(f"v_mul_f32 v{O1+u}, v{O1+u}, v{S1}")
    for u in range(4): e(f"v_fmac_f32 v{O1+u}, v{O2+u}, v{S2}")
    red8("v_add_f32", [O1, O1 + 1, O1 + 2, O1 + 3])
    for u in range(4): e(f"v_cvt_pk_bf16_f32 v{O1+u}, v{O1+u}, v{O1+u}")
    for u in range(4):
        for r in range(4): e(f"v_and_b32 v{A0+4*u+r}, v{O1+u}, v{PM+r}")
        if u >= 1:
            w = u - 1
            e(f"v_mfma_f32_16x16x32_bf16 v[{PD}:{PD+3}], v[{A0+4*w}:{A0+4*w+3}], v[{WO+4*w}:{WO+4*w+3}], " + ("0" if w == 0 else f"v[{PD}:{PD+3}]"))
    e(f"v_mfma_f32_16x16x32_bf16 v[{PD}:{PD+3}], v[{A0+12}:{A0+15}], v[{WO+12}:{WO+15}], v[{PD}:{PD+3}]")
    e(f"ds_write_b128 v{pT2}, v[{PD}:{PD+3}] offset:512")
    e("s_mov_b64 exec, 1"); e(f"ds_add_rtn_u32 v{pT0}, v4, v5 offset:8"); e("s_mov_b64 exec, -1")
    e("s_waitcnt lgkmcnt(0)")
    e(f"v_readfirstlane_b32 s48, v{pT0}"); e("s_cmp_lg_u32 s48, 3"); e("s_cbranch_scc1 L_end")
    for w in range(4): e(f"ds_read_b128 v[{W0+4*w}:{W0+4*w+3}], v{pT3} offset:{512+1024*w}")
    e("s_waitcnt lgkmcnt(2)")
    for r in range(4): e(f"v_add_f32 v{W0+r}, v{W0+r}, v{W0+4+r}")
    e("s_waitcnt lgkmcnt(0)")
    for r in range(4): e(f"v_add_f32 v{W0+8+r}, v{W0+8+r}, v{W0+12+r}")
    for r in range(4): e(f"v_add_f32 v{W0+r}, v{W0+r}, v{W0+8+r}")
    tag4(W0, W0, pFF)
    e(f"global_store_dwordx4 v{pGr}, v[{W0}:{W0+3}], s[40:41] sc1")
    stamp(6)
    a.label("L_end")
    if stamps:
        stamp(7)
        e("s_waitcnt lgkmcnt(0)")
        e("s_mov_b64 exec, 1")
        e("s_lshl_b32 s48, s2, 3"); e("s_add_u32 s48, s48, s3"); e("s_lshl_b32 s48, s48, 6"); e(f"s_add_u32 s48, s48, {STAMP}")
        e("v_mov_b32 v1, s48")
        for i in range(16): e(f"v_mov_b32 v{8+i}, s{64+i}")
        for i in range(4): e(f"global_store_dwordx4 v1, v[{8+4*i}:{11+4*i}], s[40:41] offset:{16*i}")
    a.label("L_exit")
    a.label("L_last")
    e("s_endpgm")

    body = a.finalize()
    L = [HDR.rstrip(), "; @launch grid=(256,1,1) block=(512,1,1) lds=4608",
         '.amdgcn_target "amdgcn-amd-amdhsa--gfx950"', ".text", f".globl {NAME}_kernel", ".p2align 8",
         f".type {NAME}_kernel,@function", f"{NAME}_kernel:"]
    if stamps: L += [f"s_mov_b64 s[{64+2*i}:{65+2*i}], 0" for i in range(1, 8)]
    L += ["    " + x if not x.endswith(":") else x for x in body]
    L += ['.section .rodata,"a"', ".p2align 6", f".amdhsa_kernel {NAME}_kernel",
          "  .amdhsa_next_free_vgpr 200", "  .amdhsa_next_free_sgpr 96", "  .amdhsa_accum_offset 200",
          "  .amdhsa_group_segment_fixed_size 0", "  .amdhsa_kernarg_size 104", "  .amdhsa_user_sgpr_count 2",
          "  .amdhsa_user_sgpr_kernarg_segment_ptr 1", "  .amdhsa_system_sgpr_workgroup_id_x 1", ".end_amdhsa_kernel"]
    return "\n".join(L) + "\n"

if __name__ == "__main__":
    open("k1.s", "w").write(gen())
    open("k1_st.s", "w").write(gen(stamps=True))
    open("k1f.s", "w").write(gen(fast=True))
    open("k1f_st.s", "w").write(gen(stamps=True, fast=True))
```

```python
import sys, struct
from asmlib import Asm
NAME = "recurrent_scan__sliding_block_cached__dense_activation_squared_relu__decode"
HDR = open("cdna_kernels/" + NAME + ".s.ref").read().split("; Override launch")[0]

EP, QP, YP, FP, OP, DELTA = 0x0, 0x10000, 0x80000, 0xC0000, 0x100000, 0x200000
STAMP = 0x800000
FULL = "row_mask:0xf bank_mask:0xf"
LOG2E = 1.4426950408889634
def f32(x): return "0x%08x" % struct.unpack("<I", struct.pack("<f", x))[0]
MF = "v_mfma_f32_16x16x32_bf16"
QCNT, VCNT, YCNT, OCNT = 0, 4, 8, 12

def gen(stamps=False, prefetch=True, thr=8, burst=0, thr0=3, n0=8, vsig=32, exp=()):
    a = Asm(); e = a.e
    def stamp(i):
        if stamps: e(f"s_memrealtime s[{64+2*i}:{65+2*i}]")
    def xrow(op, v, t):
        e(f"v_mov_b32 v{t}, v{v}"); e(f"v_permlane16_swap_b32 v{v}, v{t}"); e(f"{op} v{v}, v{v}, v{t}")
        e(f"v_mov_b32 v{t}, v{v}"); e(f"v_permlane32_swap_b32 v{v}, v{t}"); e(f"{op} v{v}, v{v}, v{t}")
    RED8 = ("quad_perm:[1,0,3,2]", "quad_perm:[2,3,0,1]", "row_half_mirror")
    def red8(op, regs):
        for ctl in RED8:
            for v in regs: e(f"{op}_dpp v{v}, v{v}, v{v} {ctl} {FULL}")
    def tag4(D, S):
        for r in range(4): e(f"v_bfi_b32 v{D+r}, v{vFF}, s{12+r}, v{S+r}")
    def pub(off, data):
        e(f"global_store_dwordx4 v{off}, v[{data}:{data+3}], s[62:63]")
        if "noB" not in exp: e(f"global_store_dwordx4 v{off}, v[{data}:{data+3}], s[40:41] sc1")
    def check(grans, acc, extra=()):
        allr = []
        for G in grans:
            for r in range(4): e(f"v_xor_b32 v{G+r}, s{12+r}, v{G+r}"); allr.append(G + r)
        e(f"v_or3_b32 v{acc}, v{allr[0]}, v{allr[1]}, v{allr[2]}")
        rest = allr[3:]
        while len(rest) >= 2:
            e(f"v_or3_b32 v{acc}, v{acc}, v{rest[0]}, v{rest[1]}"); rest = rest[2:]
        if rest: e(f"v_or_b32 v{acc}, v{acc}, v{rest[0]}")
        e(f"v_cmp_ne_u32_sdwa vcc, v{acc}, v4 src0_sel:BYTE_0 src1_sel:DWORD")
    def poll(lbl, loads, grans, acc, dual=True):
        e(f"s_movk_i32 s43, 0x3fff")
        a.label(lbl)
        if dual: e("s_and_b32 s48, s43, 63"); e("s_cselect_b64 s[60:61], s[62:63], s[40:41]")
        for l in loads: e(l.replace("BASE", "s[60:61]" if dual else "s[40:41]"))
        e("s_sub_u32 s43, s43, 1"); e("s_cbranch_scc1 L_end")
        e("s_waitcnt vmcnt(0)")
        check(grans, acc)
        e(f"s_cbranch_vccnz {lbl}")
    def ldswait(lbl, off, val, vt, sleep=1):
        e("s_mov_b32 s43, 0x40000")
        if sleep:
            e(f"s_branch {lbl}_in")
            a.label(lbl)
            e(f"s_sleep {sleep}")
            a.label(lbl + "_in")
        else: a.label(lbl)
        e(f"ds_read_b32 v{vt}, v4 offset:{off}")
        e("s_sub_u32 s43, s43, 1"); e("s_cbranch_scc1 L_end")
        e("s_waitcnt lgkmcnt(0)")
        e(f"v_cmp_gt_u32 vcc, {val}, v{vt}")
        e(f"s_cbranch_vccnz {lbl}")
    def ldsinc(off):
        e("s_mov_b64 exec, 1"); e(f"ds_add_u32 v4, v5 offset:{off}"); e("s_mov_b64 exec, -1")
    def red64(G):
        e(f"v_permlane32_swap_b32 v{G}, v{G+1}"); e(f"v_permlane32_swap_b32 v{G+2}, v{G+3}")
        e(f"v_add_f32 v{G}, v{G}, v{G+1}"); e(f"v_add_f32 v{G+2}, v{G+2}, v{G+3}")
        e(f"v_permlane16_swap_b32 v{G}, v{G+2}"); e(f"v_add_f32 v{G}, v{G}, v{G+2}")
        for n in (8, 4, 2, 1): e(f"v_add_f32_dpp v{G}, v{G}, v{G} row_ror:{n} {FULL}")
    def common2():
        e(f"v_and_b32 v{T0}, 1, v0"); e(f"v_lshlrev_b32 v{T0}, 4, v{T0}")
        e(f"v_mov_b32 v{T1}, 0xffff"); e(f"v_lshlrev_b32 v{T0}, v{T0}, v{T1}")
        e(f"v_bfe_u32 v{T1}, v0, 1, 2")
        for r in range(4): e(f"v_cmp_eq_u32 s[{80+2*r}:{81+2*r}], {r}, v{T1}")
        e(f"v_mov_b32 v{vFF}, 0xff")
        e(f"s_add_u32 s62, s40, {DELTA}"); e("s_addc_u32 s63, s41, 0")
        e(f"v_and_b32 v{vGr}, 1, v3"); e(f"v_lshlrev_b32 v{vGr}, 8, v{vGr}"); e(f"v_lshrrev_b32 v{T1}, 1, v3"); e(f"v_lshl_add_u32 v{vGr}, v{T1}, 4, v{vGr}")
        for r in range(4): e(f"v_cndmask_b32 v{MM+r}, 0, v{T0}, s[{80+2*r}:{81+2*r}]")
    def tags():
        e("s_waitcnt lgkmcnt(0)")
        e("s_mul_i32 s42, s11, 0x9E3779B1"); e("s_add_u32 s42, s42, 0x7F4A7C15")
        e("s_and_b32 s12, s42, 0xff"); e("s_bfe_u32 s13, s42, 0x80008"); e("s_bfe_u32 s14, s42, 0x80010"); e("s_lshr_b32 s15, s42, 24")

    K0, V0, BQ, DD, SS, MM, OO = 8, 72, 136, 152, 168, 172, 176
    W0, A0, XS, XR, XF, PD = 8, 72, 136, 144, 152, 176
    T0, T1, T2, T3, vGr, vFF, vB, vI, vOff, vOff2 = 180, 181, 182, 183, 184, 185, 186, 187, 188, 189
    vK, vV, vXo, vWo, vPf, vB2, vX, vOc, vSt, vSt2 = 190, 191, 192, 193, 194, 195, 196, 197, 198, 199
    G2, G3 = 200, 204
    NV = 208

    stamp(0)
    if "leak" in exp: e("s_memrealtime s[64:65]")
    e("s_cmp_ge_u32 s2, 256"); e("s_cbranch_scc1 L_exit")
    e("s_load_dwordx16 s[16:31], s[0:1], 0")
    e("s_load_dwordx8 s[32:39], s[0:1], 64")
    e("s_load_dwordx2 s[40:41], s[0:1], 96")
    e("v_lshrrev_b32 v1, 6, v0"); e("v_and_b32 v0, 63, v0")
    e("v_mov_b32 v4, 0"); e("v_mov_b32 v5, 0")
    if prefetch:
        e("s_getpc_b64 s[58:59]")
        a.label("L_pc")
        e(f"v_lshlrev_b32 v{T0}, 10, v1"); e(f"v_lshl_add_u32 v{T0}, v0, 7, v{T0}")
        e(f"v_min_u32 v{T0}, L_last-L_pc, v{T0}")
        e("s_mov_b64 exec, 0xff")
        e(f"global_load_dword v{vPf}, v{T0}, s[58:59]")
        e("s_mov_b64 exec, -1")
    e("v_readfirstlane_b32 s3, v1")
    e("ds_write_b64 v4, v[4:5]"); e("ds_write_b64 v4, v[4:5] offset:8")
    e("s_and_b32 s49, s2, 7"); e("s_lshr_b32 s50, s2, 3")
    e("s_lshl_b32 s4, s49, 2"); e("s_lshr_b32 s5, s50, 3"); e("s_add_u32 s4, s4, s5")
    e("s_and_b32 s5, s50, 7")
    e("s_lshr_b32 s6, s5, 2"); e("s_and_b32 s7, s5, 3")
    e("s_and_b32 s8, s5, 1"); e("s_lshr_b32 s9, s5, 1")
    e("s_lshl_b32 s10, s4, 1"); e("s_add_u32 s10, s10, s8")
    e("v_and_b32 v2, 15, v0"); e("v_lshrrev_b32 v3, 4, v0")
    e(f"v_bfe_u32 v{vB}, v0, 3, 1"); e(f"v_and_b32 v{vI}, 7, v0")
    e(f"v_lshlrev_b32 v{vV}, 4, v0")
    e("s_and_b32 s51, s50, 24"); e("s_add_u32 s51, s51, s49"); e("s_lshl_b32 s51, s51, 3"); e("s_add_u32 s51, s51, s5")
    e("s_add_u32 s55, s51, 256")
    e("s_lshl_b32 s54, s4, 3"); e("s_add_u32 s54, s54, s5")
    e("s_movk_i32 s52, 2752"); e("s_mov_b32 s46, 1409024"); e("s_mov_b32 s47, 0x20000")
    e("s_cmp_eq_u32 s3, 4")
    e("s_cselect_b32 s51, s54, s51"); e("s_cselect_b32 s55, s54, s55")
    e("s_cselect_b32 s52, 0x2000, s52"); e("s_cselect_b32 s46, 0x400000, s46")
    e("s_lshr_b32 s54, s51, 3"); e("s_lshl_b32 s54, s54, 8")
    e("s_mul_i32 s57, s5, s52"); e("s_lshl_b32 s57, s57, 6"); e("s_add_u32 s57, s57, s54")
    e("s_lshl_b32 s56, s52, 4"); e("s_lshl_b32 s53, s5, 7")
    e(f"v_lshl_add_u32 v{T0}, v3, 3, v{vI}"); e(f"v_lshlrev_b32 v{T0}, 5, v{T0}"); e(f"v_lshl_add_u32 v{T0}, v{vB}, 10, v{T0}")
    e(f"v_lshlrev_b32 v{T1}, 5, v3"); e(f"v_lshl_add_u32 v{T1}, v{vB}, 10, v{T1}"); e(f"v_add_u32 v{T1}, s53, v{T1}")
    e(f"v_lshlrev_b32 v{T2}, 4, v2"); e(f"v_mad_u32_u24 v{T2}, v3, s56, v{T2}")
    e("v_mov_b32 v5, 1")
    e("s_waitcnt lgkmcnt(0)")
    e("s_load_dword s11, s[40:41], 0")
    e("s_barrier")
    e("s_cmp_lt_u32 s3, 4"); e("s_cbranch_scc1 L_S")
    e("s_cmp_eq_u32 s3, 7"); e("s_cbranch_scc1 L_P3")
    e("s_cmp_eq_u32 s3, 6"); e("s_cbranch_scc1 L_Pnone")
    e("s_cmp_ge_u32 s55, 344"); e("s_cbranch_scc1 L_Pnone")
    e("s_cmp_eq_u32 s3, 4"); e("s_cselect_b64 s[44:45], s[22:23], s[28:29]")
    e(f"global_load_dwordx4 v[{XS}:{XS+3}], v{T0}, s[16:17]"); e(f"global_load_dwordx4 v[{XS+4}:{XS+7}], v{T0}, s[16:17] offset:16")
    e(f"global_load_dwordx4 v[{XR}:{XR+3}], v{T1}, s[16:17]"); e(f"global_load_dwordx4 v[{XR+4}:{XR+7}], v{T1}, s[16:17] offset:16")
    if "lateP1" in exp:
        e("s_cbranch_scc1 L_tq"); e("s_waitcnt vmcnt(0)"); a.label("L_tq")
    for u in range(16):
        e(f"buffer_load_dwordx4 v[{W0+4*u}:{W0+4*u+3}], v{T2}, s[44:47], s57 offen nt")
        if u < 15: e("s_add_u32 s57, s57, s52")
    e("s_branch L_tile2")

    a.label("L_S")
    e(f"v_bfe_u32 v{vK}, v0, 2, 2"); e(f"v_lshlrev_b32 v{vK}, 8, v{vK}")
    e(f"v_lshl_add_u32 v{vK}, v3, 6, v{vK}"); e(f"v_and_b32 v{T0}, 3, v0"); e(f"v_lshl_add_u32 v{vK}, v{T0}, 4, v{vK}")
    e(f"v_lshl_add_u32 v{T0}, v3, 2, v{T0}"); e(f"v_lshlrev_b32 v{T3}, 4, v{T0}")
    e("s_lshl_b32 s48, s6, 5"); e("s_add_u32 s48, s48, s4"); e("s_lshl_b32 s48, s48, 4"); e("s_add_u32 s48, s48, s7")
    e("s_lshl_b32 s48, s48, 2"); e("s_add_u32 s48, s48, s3"); e("s_lshl_b32 s48, s48, 14"); e("s_add_u32 s48, s48, 0xC1000")
    e("s_add_u32 s18, s18, s48"); e("s_addc_u32 s19, s19, 0"); e("s_add_u32 s20, s20, s48"); e("s_addc_u32 s21, s21, 0")
    e("s_add_u32 s52, s18, 0x2000"); e("s_addc_u32 s53, s19, 0"); e("s_add_u32 s54, s20, 0x2000"); e("s_addc_u32 s55, s21, 0")
    for n in range(32):
        t = n % 16
        if n == thr0:
            for r in range(16): e(f"v_mov_b32 v{BQ+r}, 0")
            common2()
            e("s_lshl_b32 s56, s4, 1"); e("s_add_u32 s56, s56, s6"); e("s_lshl_b32 s56, s56, 2"); e("s_add_u32 s56, s56, s7")
            e("s_lshl_b32 s56, s56, 2"); e("s_add_u32 s56, s56, s3")
            e("s_lshl_b32 s57, s56, 10"); e(f"s_add_u32 s57, s57, {OP}")
            e(f"v_add_u32 v{vOff}, s57, v{vV}")
        th = thr0 if n < n0 else thr
        if th <= n < 32 - burst: e(f"s_waitcnt vmcnt({th-1})")
        if n < 16: e(f"global_load_dwordx4 v[{K0+4*t}:{K0+4*t+3}], v{vK}, s[{18 if t<8 else 52}:{19 if t<8 else 53}] offset:{(t%8)*1024-4096} nt")
        else: e(f"global_load_dwordx4 v[{V0+4*t}:{V0+4*t+3}], v{vV}, s[{20 if t<8 else 54}:{21 if t<8 else 55}] offset:{(t%8)*1024-4096} nt")
        if n + 1 == vsig: ldsinc(VCNT)
    tags()
    stamp(1)
    ldswait("L_sq", QCNT, 4, T0)
    stamp(2)
    for t in range(4):
        e(f"s_mov_b32 exec_lo, 0x{0x000F000F << (4*t):08x}"); e("s_mov_b32 exec_hi, exec_lo")
        e(f"ds_read_b128 v[{BQ+4*t}:{BQ+4*t+3}], v{T3} offset:64")
    e("s_mov_b64 exec, -1")
    for t in range(4):
        e(f"s_waitcnt vmcnt(16) lgkmcnt({3-t})")
        for c in range(4):
            k = K0 + 4 * (4 * c + t); d = DD + 4 * c
            e(f"{MF} v[{d}:{d+3}], v[{k}:{k+3}], v[{BQ+4*t}:{BQ+4*t+3}], " + ("0" if t == 0 else f"v[{d}:{d+3}]"))
    for c in range(4): e(f"v_mov_b32_dpp v{SS+c}, v{DD+4*c} quad_perm:[0,0,0,0] {FULL}")
    for r in range(1, 4):
        for c in range(4): e(f"v_add_f32_dpp v{SS+c}, v{DD+4*c+r}, v{SS+c} quad_perm:[{r},{r},{r},{r}] {FULL}")
    vM, vL = DD, DD + 1
    e(f"v_max3_f32 v{vM}, v{SS}, v{SS+1}, v{SS+2}"); e(f"v_max_f32 v{vM}, v{vM}, v{SS+3}")
    e(f"s_mov_b32 s48, {f32(LOG2E * 128 ** -0.5)}")
    e(f"v_max_f32_dpp v{vM}, v{vM}, v{vM} row_ror:4 {FULL}")
    e(f"v_mov_b32 v{DD+2}, s42"); e(f"v_mov_b32 v{DD+3}, s42")
    e(f"v_max_f32_dpp v{vM}, v{vM}, v{vM} row_ror:8 {FULL}")
    xrow("v_max_f32", vM, T0)
    e(f"v_mul_f32 v{vM}, s48, v{vM}")
    for c in range(4): e(f"v_fma_f32 v{SS+c}, v{SS+c}, s48, -v{vM}")
    for c in range(4): e(f"v_exp_f32 v{SS+c}, v{SS+c}")
    e(f"v_add_f32 v{vL}, v{SS}, v{SS+1}"); e(f"v_add_f32 v{T0}, v{SS+2}, v{SS+3}"); e(f"v_add_f32 v{vL}, v{vL}, v{T0}")
    for c in range(4): e(f"v_cvt_pk_bf16_f32 v{SS+c}, v{SS+c}, v{SS+c}")
    stamp(3)
    def andt(t):
        for r in range(4): e(f"v_and_b32_dpp v{K0+4*t+r}, v{SS+t//4}, v{MM+r} row_newbcast:{4*(t%4)} {FULL}")
    def pv(t):
        e(f"s_waitcnt vmcnt({15-t})")
        e(f"{MF} v[{OO}:{OO+3}], v[{K0+4*t}:{K0+4*t+3}], v[{V0+4*t}:{V0+4*t+3}], " + ("0" if t == 0 else f"v[{OO}:{OO+3}]"))
    lsum = [f"v_add_f32_dpp v{vL}, v{vL}, v{vL} row_ror:4 {FULL}", f"v_add_f32_dpp v{vL}, v{vL}, v{vL} row_ror:8 {FULL}",
            f"v_mov_b32 v{T0}, v{vL}", f"v_permlane16_swap_b32 v{vL}, v{T0}\nv_add_f32 v{vL}, v{vL}, v{T0}\nv_mov_b32 v{T0}, v{vL}",
            f"v_permlane32_swap_b32 v{vL}, v{T0}\nv_add_f32 v{vL}, v{vL}, v{T0}"]
    LA = 8
    for t in range(LA):
        if lsum: e(lsum.pop(0))
        andt(t)
    for t in range(16):
        if t + LA < 16: andt(t + LA)
        if t == 8: stamp(4)
        pv(t)
    e("s_mov_b32 exec_hi, 0")
    tag4(DD, OO)
    e("s_movk_i32 exec_hi, 0xff")
    pub(vOff, DD)
    ldsinc(OCNT)
    stamp(5)
    e("s_branch L_end")

    a.label("L_tile2")
    stamp(1)
    common2()
    e(f"v_mov_b32 v{T2}, 0x3f803f80")
    e("s_waitcnt vmcnt(18)")
    sS, sQ = T0, T1
    for r in range(8):
        e(f"v_dot2_f32_bf16 v{sS}, v{XS+r}, v{T2}, " + ("0" if r == 0 else f"v{sS}"))
        e(f"v_dot2_f32_bf16 v{sQ}, v{XS+r}, v{XS+r}, " + ("0" if r == 0 else f"v{sQ}"))
    e("s_waitcnt vmcnt(16)")
    unp = []
    for r in range(8):
        unp.append(f"v_lshlrev_b32 v{XF+2*r}, 16, v{XR+r}"); unp.append(f"v_and_b32 v{XF+2*r+1}, 0xffff0000, v{XR+r}")
    e(unp.pop()); e(unp.pop())
    for ctl in RED8:
        for v in (sS, sQ): e(f"v_add_f32_dpp v{v}, v{v}, v{v} {ctl} {FULL}")
        e(unp.pop())
    for sw in ("16", "32"):
        e(f"v_mov_b32 v{T2}, v{sS}"); e(f"v_mov_b32 v{T3}, v{sQ}"); e(unp.pop()); e(f"v_permlane{sw}_swap_b32 v{sS}, v{T2}"); e(f"v_permlane{sw}_swap_b32 v{sQ}, v{T3}")
        e(f"v_add_f32 v{sS}, v{sS}, v{T2}"); e(f"v_add_f32 v{sQ}, v{sQ}, v{T3}")
    e(f"v_mul_f32 v{sS}, {f32(1/512)}, v{sS}")
    e(f"v_mul_f32 v{T2}, v{sS}, v{sS}")
    e(f"s_mov_b32 s56, {f32(1/512)}")
    e(f"v_fma_f32 v{sQ}, v{sQ}, s56, -v{T2}"); e(f"v_max_f32 v{sQ}, 0, v{sQ}")
    e(f"v_cvt_pk_bf16_f32 v{T2}, v{sS}, v{sQ}")
    e(f"v_lshlrev_b32 v{sS}, 16, v{T2}"); e(f"v_and_b32 v{sQ}, 0xffff0000, v{T2}")
    e(f"v_add_f32 v{sQ}, {f32(1e-5)}, v{sQ}"); e(f"v_cvt_pk_bf16_f32 v{sQ}, v{sQ}, v{sQ}"); e(f"v_lshlrev_b32 v{sQ}, 16, v{sQ}")
    e(f"v_sqrt_f32 v{sQ}, v{sQ}"); e(unp.pop()); e(f"v_cvt_pk_bf16_f32 v{sQ}, v{sQ}, v{sQ}"); e(f"v_lshlrev_b32 v{sQ}, 16, v{sQ}")
    e(f"v_rcp_f32 v{sQ}, v{sQ}")
    for x in unp: e(x)
    e(f"v_mul_f32 v{sS}, v{sS}, v{sQ}")
    for u in range(16): e(f"v_fma_f32 v{XF+u}, v{XF+u}, v{sQ}, -v{sS}")
    for u in range(16): e(f"v_cvt_pk_bf16_f32 v{XF+u}, v{XF+u}, v{XF+u}")
    e("s_lshl_b32 s55, s55, 10"); e(f"s_add_u32 s55, s55, {QP}"); e(f"v_add_u32 v{T0}, s55, v{vV}")
    for u in range(17):
        if u < 16:
            for r in range(4): e(f"v_and_b32 v{A0+4*u+r}, v{XF+u}, v{MM+r}")
        if u >= 1:
            w = u - 1
            e(f"s_waitcnt vmcnt({15-w})")
            e(f"{MF} v[{PD}:{PD+3}], v[{A0+4*w}:{A0+4*w+3}], v[{W0+4*w}:{W0+4*w+3}], " + ("0" if w == 0 else f"v[{PD}:{PD+3}]"))
    tags()
    tag4(PD, PD)
    pub(T0, PD)
    stamp(2)
    e("s_cmp_lg_u32 s3, 4"); e("s_cbranch_scc1 L_inc")
    e("s_lshl_b32 s52, s4, 13"); e("s_lshl_b32 s53, s6, 9"); e("s_add_u32 s52, s52, s53"); e(f"s_add_u32 s52, s52, {QP}")
    e(f"v_lshrrev_b32 v{vOff}, 2, v2"); e(f"v_lshlrev_b32 v{vOff}, 11, v{vOff}")
    e(f"v_and_b32 v{T0}, 3, v0")
    e(f"v_lshl_add_u32 v{T3}, v3, 2, v{T0}"); e(f"v_lshlrev_b32 v{T3}, 4, v{T3}")
    e(f"v_add3_u32 v{vOff}, v{vOff}, v{T3}, s52")
    if "qdrain" in exp: e("s_waitcnt vmcnt(0)")
    poll("L_pq", [f"global_load_dwordx4 v[{W0+4*i}:{W0+4*i+3}], v{vOff}, BASE offset:{o} sc1" for i, o in enumerate((0, 256, 1024, 1280))],
         [W0, W0 + 4, W0 + 8, W0 + 12], T0)
    for r in range(8): e(f"v_add_f32 v{W0+r}, v{W0+r}, v{W0+8+r}")
    for n in (4, 8):
        for r in range(8): e(f"v_add_f32_dpp v{W0+r}, v{W0+r}, v{W0+r} row_ror:{n} {FULL}")
    for r in range(4): e(f"v_cvt_pk_bf16_f32 v{W0+8+r}, v{W0+2*r}, v{W0+2*r+1}")
    e(f"ds_write_b128 v{T3}, v[{W0+8}:{W0+11}] offset:64")
    e("s_branch L_inc")

    a.label("L_Pnone")
    common2(); tags()
    a.label("L_inc")
    ldsinc(QCNT)
    stamp(3)
    e("s_branch L_wo")

    a.label("L_P3")
    common2(); tags(); ldsinc(QCNT)
    e("s_lshl_b32 s52, s10, 14"); e("s_lshl_b32 s53, s9, 8"); e("s_add_u32 s52, s52, s53")
    e(f"v_lshlrev_b32 v{T2}, 12, v3"); e(f"v_lshl_add_u32 v{T2}, v2, 4, v{T2}"); e(f"v_add_u32 v{T2}, s52, v{T2}")
    e("s_lshl_b32 s52, s10, 5"); e(f"v_lshlrev_b32 v{T3}, 3, v3"); e(f"v_add_u32 v{T3}, s52, v{T3}")
    e("s_lshr_b32 s52, s10, 3"); e("s_lshl_b32 s52, s52, 13"); e("s_and_b32 s53, s10, 7"); e("s_lshl_b32 s53, s53, 5")
    e("s_add_u32 s52, s52, s53"); e(f"s_add_u32 s52, s52, {QP + 256*1024}")
    e(f"v_lshlrev_b32 v{vOff}, 10, v{vI}"); e(f"v_lshl_add_u32 v{vOff}, v{vB}, 9, v{vOff}")
    e(f"v_add3_u32 v{vOff}, v{vOff}, v{vGr}, s52")
    e("s_cmp_lt_u32 s10, 22"); e("s_cselect_b32 s52, 0x10000, 0"); e(f"v_add_u32 v{vOff2}, s52, v{vOff}")
    ldswait("L_fq", QCNT, 4, T0, sleep=2)
    B1 = XS
    for u in range(4): e(f"global_load_dwordx4 v[{W0+4*u}:{W0+4*u+3}], v{T2}, s[32:33] offset:{1024*u} nt")
    e(f"global_load_dwordx2 v[{B1}:{B1+1}], v{T3}, s[30:31]")
    e("s_cmp_ge_u32 s10, 22"); e("s_cbranch_scc1 L_f1")
    e(f"v_add_u32 v{T2}, 0x100000, v{T2}")
    for u in range(4): e(f"global_load_dwordx4 v[{W0+16+4*u}:{W0+16+4*u+3}], v{T2}, s[32:33] offset:{1024*u} nt")
    e(f"global_load_dwordx2 v[{B1+2}:{B1+3}], v{T3}, s[30:31] offset:2048")
    a.label("L_f1")
    stamp(1)
    H = XF
    poll("L_ph", [f"global_load_dwordx4 v[{H}:{H+3}], v{vOff}, BASE sc1", f"global_load_dwordx4 v[{H+8}:{H+11}], v{vOff2}, BASE sc1"], [H, H + 8], T0)
    stamp(2)
    def ffn2(unit):
        H = XF + 8 * unit
        red8("v_add_f32", [H, H + 1, H + 2, H + 3])
        b = B1 + 2 * unit
        e(f"v_lshlrev_b32 v{H+4}, 16, v{b}"); e(f"v_and_b32 v{H+5}, 0xffff0000, v{b}")
        e(f"v_lshlrev_b32 v{H+6}, 16, v{b+1}"); e(f"v_and_b32 v{H+7}, 0xffff0000, v{b+1}")
        for u in range(4): e(f"v_add_f32 v{H+u}, v{H+u}, v{H+4+u}")
        for u in range(4): e(f"v_max_f32 v{H+u}, 0, v{H+u}")
        for u in range(4): e(f"v_mul_f32 v{H+u}, v{H+u}, v{H+u}")
        for u in range(4): e(f"v_cvt_pk_bf16_f32 v{H+u}, v{H+u}, v{H+u}")
        for u in range(4):
            for r in range(4): e(f"v_and_b32 v{A0+4*u+r}, v{H+u}, v{MM+r}")
        for u in range(4):
            w = W0 + 16 * unit + 4 * u
            e(f"{MF} v[{PD}:{PD+3}], v[{A0+4*u}:{A0+4*u+3}], v[{w}:{w+3}], " + ("0" if (u == 0 and unit == 0) else f"v[{PD}:{PD+3}]"))
    ffn2(0)
    e("s_cmp_ge_u32 s10, 22"); e("s_cbranch_scc1 L_f2")
    ffn2(1)
    a.label("L_f2")
    e("s_lshl_b32 s52, s9, 6"); e("s_add_u32 s52, s52, s10"); e("s_lshl_b32 s52, s52, 10"); e(f"s_add_u32 s52, s52, {FP}")
    e(f"v_add_u32 v{T0}, s52, v{vV}")
    tag4(PD, PD)
    e(f"global_store_dwordx4 v{T0}, v[{PD}:{PD+3}], s[40:41] sc1")
    stamp(3)

    a.label("L_wo")
    e("s_sub_u32 s51, s3, 4")
    e("s_lshl_b32 s52, s10, 16"); e("s_lshl_b32 s53, s51, 14"); e("s_add_u32 s52, s52, s53"); e("s_lshl_b32 s53, s9, 8"); e("s_add_u32 s52, s52, s53")
    e(f"v_lshlrev_b32 v{vWo}, 12, v3"); e(f"v_lshl_add_u32 v{vWo}, v2, 4, v{vWo}"); e(f"v_add_u32 v{vWo}, s52, v{vWo}")
    e(f"v_lshl_add_u32 v{T3}, v{vB}, 4, v{vI}"); e("s_lshl_b32 s52, s4, 15"); e(f"s_add_u32 s52, s52, {OP}")
    e(f"v_lshlrev_b32 v{vSt}, 10, v{T3}"); e(f"v_add_u32 v{vSt}, s52, v{vSt}"); e(f"v_add_u32 v{vSt2}, 0x2000, v{vSt}")
    e("s_lshl_b32 s52, s8, 2"); e("s_add_u32 s52, s52, s51"); e("s_lshl_b32 s52, s52, 5")
    e(f"v_add3_u32 v{vOff}, v{vSt}, v{vGr}, s52"); e(f"v_add_u32 v{vOff2}, 0x2000, v{vOff}")
    e("s_lshl_b32 s52, s51, 10"); e(f"v_add_u32 v{T2}, s52, v{vV}")
    e("s_lshl_b32 s52, s9, 6"); e("s_add_u32 s52, s52, s10"); e("s_lshl_b32 s52, s52, 10"); e(f"s_add_u32 s52, s52, {YP}")
    e(f"v_add_u32 v{vGr}, s52, v{vV}")
    e(f"v_and_b32 v{vOc}, 1, v3"); e(f"v_lshrrev_b32 v{T0}, 1, v3"); e(f"v_lshl_or_b32 v{vOc}, v{vOc}, 1, v{T0}")
    e("s_and_b32 s52, s10, 15"); e("s_lshl_b32 s52, s52, 1"); e("s_bfe_u32 s53, s10, 0x10004"); e("s_add_u32 s52, s52, s53")
    e("s_lshl_b32 s52, s52, 2"); e("s_lshl_b32 s53, s9, 7"); e("s_add_u32 s52, s52, s53")
    e(f"v_add_lshl_u32 v{vOc}, v{vOc}, s52, 1")
    e("s_lshr_b32 s52, s10, 5"); e("s_lshl_b32 s52, s52, 10"); e(f"v_add_u32 v{vXo}, s52, v{vOc}")
    e("s_lshl_b32 s52, s9, 16"); e("s_lshl_b32 s53, s10, 4"); e("s_add_u32 s52, s52, s53"); e(f"s_add_u32 s52, s52, {YP}")
    e(f"v_lshlrev_b32 v{vK}, 10, v0"); e(f"v_add_u32 v{vK}, s52, v{vK}"); e(f"v_add_u32 v{T3}, {FP-YP}, v{vK}")
    e(f"global_load_ushort v{vB2}, v{vOc}, s[34:35]")
    e(f"global_load_ushort v{vX}, v{vXo}, s[16:17]")
    O1, O2, S1, S2 = XS, XS + 4, XF, XF + 4
    oloads = [f"global_load_dwordx4 v[{S1}:{S1+3}], v{vSt}, BASE offset:512 sc1", f"global_load_dwordx4 v[{S2}:{S2+3}], v{vSt2}, BASE offset:512 sc1",
              f"global_load_dwordx4 v[{O1}:{O1+3}], v{vOff}, BASE sc1", f"global_load_dwordx4 v[{O2}:{O2+3}], v{vOff2}, BASE sc1"]
    if "notouch" not in exp:
        e("s_cmp_lg_u32 s3, 6"); e("s_cbranch_scc1 L_nt")
        for l in oloads: e(l.replace("BASE", "s[62:63]"))
        e(f"global_load_dword v{vPf}, v{vK}, s[40:41] sc1")
        e(f"global_load_ushort v{vPf}, v{vXo}, s[36:37]")
        a.label("L_nt")
    ldswait("L_pv", VCNT, 4, T0, sleep=2)
    WO = 40
    for u in range(4): e(f"global_load_dwordx4 v[{WO+4*u}:{WO+4*u+3}], v{vWo}, s[24:25] offset:{1024*u} nt")
    ldswait("L_pw", OCNT, 4 if "o1" not in exp else 1, T0, sleep=0)
    stamp(4)
    e(f"s_movk_i32 s43, 0x3fff")
    a.label("L_po")
    e("s_and_b32 s48, s43, 63"); e("s_cselect_b64 s[60:61], s[62:63], s[40:41]")
    for l in oloads: e(l.replace("BASE", "s[60:61]"))
    e("s_sub_u32 s43, s43, 1"); e("s_cbranch_scc1 L_end")
    e("s_waitcnt vmcnt(2)")
    e(f"v_max_f32 v{T0}, v{S1}, v{S2}")
    e(f"v_cmp_ne_u32 s[56:57], s42, v{S1+3}"); e(f"v_cmp_ne_u32 s[58:59], s42, v{S2+3}")
    e(f"v_max_f32_dpp v{T0}, v{T0}, v{T0} {RED8[0]} {FULL}")
    e("s_or_b64 s[56:57], s[56:57], s[58:59]")
    e("s_waitcnt vmcnt(0)")
    e(f"v_max_f32_dpp v{T0}, v{T0}, v{T0} {RED8[1]} {FULL}")
    for r in range(2): e(f"v_xor_b32 v{O1+r}, s{12+r}, v{O1+r}")
    e(f"v_max_f32_dpp v{T0}, v{T0}, v{T0} {RED8[2]} {FULL}")
    for r in range(2, 4): e(f"v_xor_b32 v{O1+r}, s{12+r}, v{O1+r}")
    e(f"v_sub_f32 v{S1}, v{S1}, v{T0}"); e(f"v_sub_f32 v{S2}, v{S2}, v{T0}")
    e(f"v_exp_f32 v{S1}, v{S1}"); e(f"v_exp_f32 v{S2}, v{S2}")
    for r in range(4): e(f"v_xor_b32 v{O2+r}, s{12+r}, v{O2+r}")
    e(f"v_mul_f32 v{T0}, v{S1}, v{S1+1}"); e(f"v_fmac_f32 v{T0}, v{S2}, v{S2+1}")
    e(f"v_or3_b32 v{T1}, v{O1}, v{O1+1}, v{O1+2}"); e(f"v_or3_b32 v{T1}, v{T1}, v{O1+3}, v{O2}")
    e(f"v_add_f32_dpp v{T0}, v{T0}, v{T0} {RED8[0]} {FULL}")
    e(f"v_or3_b32 v{T1}, v{T1}, v{O2+1}, v{O2+2}"); e(f"v_or_b32 v{T1}, v{T1}, v{O2+3}")
    e(f"v_add_f32_dpp v{T0}, v{T0}, v{T0} {RED8[1]} {FULL}")
    e(f"v_cmp_ne_u32_sdwa vcc, v{T1}, v4 src0_sel:BYTE_0 src1_sel:DWORD")
    e(f"v_mul_f32 v{O1}, v{O1}, v{S1}")
    e(f"v_add_f32_dpp v{T0}, v{T0}, v{T0} {RED8[2]} {FULL}")
    e("s_or_b64 vcc, vcc, s[56:57]")
    e("s_cbranch_scc1 L_po")
    stamp(5)
    e(f"v_rcp_f32 v{T0}, v{T0}")
    for u in range(1, 4): e(f"v_mul_f32 v{O1+u}, v{O1+u}, v{S1}")
    for u in range(4): e(f"v_fmac_f32 v{O1+u}, v{O2+u}, v{S2}")
    red8("v_add_f32", [O1, O1 + 1, O1 + 2, O1 + 3])
    for u in range(4): e(f"v_mul_f32 v{O1+u}, v{O1+u}, v{T0}")
    for u in range(4): e(f"v_cvt_pk_bf16_f32 v{O1+u}, v{O1+u}, v{O1+u}")
    for u in range(5):
        if u < 4:
            for r in range(4): e(f"v_and_b32 v{A0+4*u+r}, v{O1+u}, v{MM+r}")
        if u >= 1:
            w = u - 1
            e(f"{MF} v[{PD}:{PD+3}], v[{A0+4*w}:{A0+4*w+3}], v[{WO+4*w}:{WO+4*w+3}], " + ("0" if w == 0 else f"v[{PD}:{PD+3}]"))
    e(f"ds_write_b128 v{T2}, v[{PD}:{PD+3}] offset:512")
    e("s_mov_b64 exec, 1"); e(f"ds_add_rtn_u32 v{T0}, v4, v5 offset:{YCNT}")
    e("s_waitcnt lgkmcnt(0)")
    e(f"v_cmp_ne_u32 vcc, 3, v{T0}"); e("s_mov_b64 exec, -1"); e("s_cbranch_vccnz L_end")
    for w in range(4): e(f"ds_read_b128 v[{W0+4*w}:{W0+4*w+3}], v{vV} offset:{512+1024*w}")
    e("s_waitcnt lgkmcnt(2)")
    for r in range(4): e(f"v_add_f32 v{W0+r}, v{W0+r}, v{W0+4+r}")
    e("s_waitcnt lgkmcnt(0)")
    for r in range(4): e(f"v_add_f32 v{W0+8+r}, v{W0+8+r}, v{W0+12+r}")
    for r in range(4): e(f"v_add_f32 v{W0+r}, v{W0+r}, v{W0+8+r}")
    tag4(W0, W0)
    e(f"global_store_dwordx4 v{vGr}, v[{W0}:{W0+3}], s[40:41] sc1")
    stamp(6)
    poll("L_pf", [f"global_load_dwordx4 v[{G2}:{G2+3}], v{T3}, BASE sc1"], [G2], T0, dual=False)
    e(f"global_load_dwordx4 v[{G3}:{G3+3}], v{vK}, s[40:41] sc1")
    red64(G2)
    e(f"v_lshlrev_b32 v{vB2}, 16, v{vB2}"); e(f"v_lshlrev_b32 v{vX}, 16, v{vX}")
    e(f"v_add_f32 v{vB2}, v{G2}, v{vB2}")
    e(f"v_mul_f32 v{T0}, {f32(-LOG2E)}, v{vB2}"); e(f"v_exp_f32 v{T0}, v{T0}"); e(f"v_add_f32 v{T0}, 1.0, v{T0}")
    e(f"v_rcp_f32 v{T0}, v{T0}"); e("s_movk_i32 s43, 0x3fff"); e(f"v_mul_f32 v{vB2}, v{vB2}, v{T0}")
    e("s_branch L_py_in")
    a.label("L_py")
    e(f"global_load_dwordx4 v[{G3}:{G3+3}], v{vK}, s[40:41] sc1")
    e("s_sub_u32 s43, s43, 1"); e("s_cbranch_scc1 L_end")
    a.label("L_py_in")
    e("s_waitcnt vmcnt(0)")
    check([G3], T0)
    e("s_cbranch_vccnz L_py")
    red64(G3)
    e(f"v_fma_f32 v{G3}, v{G3}, v{vB2}, v{vX}")
    e("s_mov_b32 exec_lo, 0x00010001"); e("s_mov_b32 exec_hi, 0x00010001")
    e(f"v_cvt_pk_bf16_f32 v{G3}, v{G3}, v{G3}")
    e(f"global_store_short v{vXo}, v{G3}, s[36:37]")
    if "leak" in exp:
        e("s_memrealtime s[66:67]"); e("s_waitcnt lgkmcnt(0)")
        e("s_cmp_ge_u32 s2, 8"); e("s_cbranch_scc1 L_end")
        e("s_sub_u32 s66, s66, s64"); e("s_getreg_b32 s67, hwreg(HW_REG_XCC_ID)"); e("s_lshl_b32 s67, s67, 16"); e("s_and_b32 s64, s64, 0xffff"); e("s_or_b32 s67, s67, s64")
        e(f"v_mov_b32 v{G2}, s66"); e(f"v_mov_b32 v{G2+1}, s67"); e("s_lshl_b32 s66, s2, 3"); e(f"v_mov_b32 v{T0}, s66"); e("s_mov_b64 exec, 1")
        e(f"global_store_dwordx2 v{T0}, v[{G2}:{G2+1}], s[38:39]")
    e("s_cmp_lg_u32 s2, 0"); e("s_cbranch_scc1 L_end")
    e("s_add_u32 s11, s11, 1"); e(f"v_mov_b32 v{T0}, s11"); e("s_mov_b64 exec, 1")
    e(f"global_store_dword v4, v{T0}, s[40:41] sc1")
    a.label("L_end")
    if stamps:
        stamp(7)
        e("s_waitcnt lgkmcnt(0)")
        e("s_mov_b32 s48, 3000")
        a.label("L_dly"); e("s_sleep 8"); e("s_sub_u32 s48, s48, 100"); e("s_cbranch_scc0 L_dly")
        e("s_mov_b64 exec, 1")
        e("s_lshl_b32 s48, s2, 3"); e("s_add_u32 s48, s48, s3"); e("s_lshl_b32 s48, s48, 6"); e(f"s_add_u32 s48, s48, {STAMP}")
        e("v_mov_b32 v1, s48")
        for i in range(16): e(f"v_mov_b32 v{8+i}, s{64+i}")
        for i in range(4): e(f"global_store_dwordx4 v1, v[{8+4*i}:{11+4*i}], s[40:41] offset:{16*i}")
    a.label("L_exit")
    a.label("L_last")
    e("s_endpgm")

    body = a.finalize()
    L = [HDR.rstrip(), "; @launch grid=(256,1,1) block=(512,1,1) lds=4608",
         '.amdgcn_target "amdgcn-amd-amdhsa--gfx950"', ".text", f".globl {NAME}_kernel", ".p2align 8",
         f".type {NAME}_kernel,@function", f"{NAME}_kernel:"]
    if stamps: L += [f"s_mov_b64 s[{64+2*i}:{65+2*i}], 0" for i in range(1, 8)] + ["s_nop 0"]
    L += ["    " + x if not x.endswith(":") else x for x in body]
    L += ['.section .rodata,"a"', ".p2align 6", f".amdhsa_kernel {NAME}_kernel",
          f"  .amdhsa_next_free_vgpr {NV}", "  .amdhsa_next_free_sgpr 96", f"  .amdhsa_accum_offset {NV}",
          "  .amdhsa_group_segment_fixed_size 0", "  .amdhsa_kernarg_size 104", "  .amdhsa_user_sgpr_count 2",
          "  .amdhsa_user_sgpr_kernarg_segment_ptr 1", "  .amdhsa_system_sgpr_workgroup_id_x 1", ".end_amdhsa_kernel"]
    return "\n".join(L) + "\n"

if __name__ == "__main__":
    open("k4_leak.s", "w").write(gen(exp=("notouch", "leak")))
```

```python
import sys, struct
from asmlib import Asm
NAME = "recurrent_scan__sliding_block_cached__dense_activation_squared_relu__decode"
HDR = open("cdna_kernels/" + NAME + ".s.ref").read().split("; Override launch")[0]

QP, OP, YP, FP, HP, DELTA = 0x10000, 0x80000, 0x100000, 0x150000, 0x1A0000, 0x200000
YS = 1152
STAMP = 0x800000
FULL = "row_mask:0xf bank_mask:0xf"
LOG2E = 1.4426950408889634
def f32(x): return "0x%08x" % struct.unpack("<I", struct.pack("<f", x))[0]
MF = "v_mfma_f32_16x16x32_bf16"
QCNT, VCNT, YCNT, OCNT, PUBF, VERD, FCNT = 0, 4, 8, 12, 16, 20, 24
LQ, LY, LF = 64, 512, 4608
LDS = 4608 + 2048
def gen(stamps=False, thr=8, thrK=6, thr0=2, n0=4, vsig=32, nqk=24, qdelay=6, qpipe=1, rotc=(5, 3, 8), boost=0, bmask=0xaa, pw=0, thrE=0, nE=32, ngo=13, osl=0, ysl=0, QH='sc1', OF='sc1', AST='', FF_='sc1', YF='sc1', OUTF='', oinit=-1, sched=None, YFILL='sc1 nt', fyd=0, YST='sc1', FST='sc1', og=4, exp=()):
    a = Asm(); e = a.e
    inS = [False]
    def stamp(i, force=False):
        if inS[0] and "prog" in exp and not force and i in (1, 2, 3, 4, 6): return
        if stamps: e(f"s_memrealtime s[{64+2*i}:{65+2*i}]")
    def xrow(op, v, t):
        e(f"v_mov_b32 v{t}, v{v}"); e(f"v_permlane16_swap_b32 v{v}, v{t}"); e(f"{op} v{v}, v{v}, v{t}")
        e(f"v_mov_b32 v{t}, v{v}"); e(f"v_permlane32_swap_b32 v{v}, v{t}"); e(f"{op} v{v}, v{v}, v{t}")
    RED8 = ("quad_perm:[1,0,3,2]", "quad_perm:[2,3,0,1]", "row_half_mirror")
    def red8(op, regs):
        for ctl in RED8:
            for v in regs: e(f"{op}_dpp v{v}, v{v}, v{v} {ctl} {FULL}")
    def tag4(D, S, t0):
        for r in range(4): e(f"v_bfi_b32 v{D+r}, v{vFF}, s{t0+r}, v{S+r}")
    def check(grans, acc, t0=12):
        allr = []
        for G in grans:
            for r in range(4): e(f"v_xor_b32 v{G+r}, s{t0+r}, v{G+r}"); allr.append(G + r)
        e(f"v_or3_b32 v{acc}, v{allr[0]}, v{allr[1]}, v{allr[2]}")
        rest = allr[3:]
        while len(rest) >= 2:
            e(f"v_or3_b32 v{acc}, v{acc}, v{rest[0]}, v{rest[1]}"); rest = rest[2:]
        if rest: e(f"v_or_b32 v{acc}, v{acc}, v{rest[0]}")
        e(f"v_cmp_ne_u32_sdwa vcc, v{acc}, v4 src0_sel:BYTE_0 src1_sel:DWORD")
    def pollhead(lbl):
        e("s_movk_i32 s43, 0x3fff")
        a.label(lbl)
        e("s_and_b32 s48, s43, 63"); e("s_cselect_b64 s[60:61], s[62:63], s[40:41]")
    def seltags():
        e("s_cselect_b64 s[12:13], s[92:93], s[84:85]"); e("s_cselect_b64 s[14:15], s[94:95], s[86:87]")
    def ldswait(lbl, off, val, vt, sleep=1):
        e("s_mov_b32 s43, 0x40000")
        if sleep:
            e(f"s_branch {lbl}_in"); a.label(lbl); e(f"s_sleep {sleep}"); a.label(lbl + "_in")
        else: a.label(lbl)
        e(f"ds_read_b32 v{vt}, v4 offset:{off}")
        e("s_sub_u32 s43, s43, 1"); e("s_cbranch_scc1 L_end")
        e("s_waitcnt lgkmcnt(0)")
        e(f"v_cmp_gt_u32 vcc, {val}, v{vt}")
        e(f"s_cbranch_vccnz {lbl}")
    def ldsinc(off):
        e("s_mov_b64 exec, 1"); e(f"ds_add_u32 v4, v5 offset:{off}"); e("s_mov_b64 exec, -1")
    def common2():
        e("s_mov_b32 s59, 0")
        e("s_and_b32 s8, s5, 1"); e("s_lshr_b32 s9, s5, 1"); e("s_lshl1_add_u32 s10, s4, s8")
        e(f"v_and_b32 v{T0}, 1, v0"); e(f"v_lshlrev_b32 v{T0}, 4, v{T0}")
        e(f"v_mov_b32 v{T1}, 0xffff"); e(f"v_lshlrev_b32 v{T0}, v{T0}, v{T1}")
        e(f"v_bfe_u32 v{T1}, v0, 1, 2")
        for r in range(4): e(f"v_cmp_eq_u32 s[{80+2*r}:{81+2*r}], {r}, v{T1}")
        e(f"v_mov_b32 v{vFF}, 0xff")
        e(f"s_add_u32 s62, s40, {DELTA}"); e("s_addc_u32 s63, s41, 0")
        for r in range(4): e(f"v_cndmask_b32 v{MM+r}, 0, v{T0}, s[{80+2*r}:{81+2*r}]")
    def perm():
        if "perm" in exp:
            e(f"v_bfe_u32 v{vH}, v0, 1, 4"); e(f"v_and_b32 v{T1}, 1, v0"); e(f"v_lshl_add_u32 v{vH}, v{T1}, 4, v{vH}"); e(f"v_and_or_b32 v{vH}, v0, 32, v{vH}"); e(f"v_lshlrev_b32 v{vH}, 4, v{vH}")
    def woloads():
        e(f"v_lshlrev_b32 v{vOc}, 12, v3"); e(f"v_lshl_add_u32 v{vOc}, v2, 4, v{vOc}")
        e("s_lshl_b32 s52, s10, 16"); e("s_lshl_b32 s53, s3, 14"); e("s_add_u32 s52, s52, s53"); e("s_lshl_b32 s53, s9, 8"); e("s_add_u32 s52, s52, s53"); e("s_sub_u32 s52, s52, 0x10000")
        e(f"v_add_u32 v{vOc}, s52, v{vOc}")
        for u in range(4): e(f"global_load_dwordx4 v[{40+4*u}:{43+4*u}], v{vOc}, s[24:25] offset:{1024*u} nt")
    def tags():
        e("s_getreg_b32 s96, hwreg(HW_REG_XCC_ID, 0, 4)")
        e("s_waitcnt lgkmcnt(0)")
        e("s_mul_i32 s97, s11, 0x9E3779B1"); e("s_add_u32 s97, s97, 0x7F4A7C15")
        e("s_lshl_b32 s97, s97, 6"); e("s_or_b32 s97, s97, 32"); e("s_or_b32 s96, s96, s97"); e("s_or_b32 s97, s97, 16")
        for t0, w in ((92, 96), (84, 97)):
            e(f"s_and_b32 s{t0}, s{w}, 0xff"); e(f"s_bfe_u32 s{t0+1}, s{w}, 0x80008"); e(f"s_bfe_u32 s{t0+2}, s{w}, 0x80010"); e(f"s_lshr_b32 s{t0+3}, s{w}, 24")
    def verdict_wait(lbl, vt):
        e("s_movk_i32 s43, 200")
        a.label(lbl)
        e(f"ds_read_b32 v{vt}, v4 offset:{VERD}")
        e("s_sub_u32 s43, s43, 1"); e(f"s_cbranch_scc1 {lbl}_b")
        e("s_waitcnt lgkmcnt(0)")
        e(f"v_readfirstlane_b32 s48, v{vt}")
        e("s_cmp_eq_u32 s48, 1"); e("s_cbranch_scc1 L_end")
        e("s_sleep 4")
        e("s_cmp_eq_u32 s48, 0"); e(f"s_cbranch_scc1 {lbl}")
        a.label(lbl + "_b")

    K0, V0, BQ, DD, SS, MM, OO = 8, 72, 136, 152, 168, 172, 176
    W0, A0, XS, XR, XF, PD = 8, 72, 136, 144, 152, 176
    T0, T1, T2, T3, vGr, vFF, vB, vI, vOff, vOff2 = 180, 181, 182, 183, 184, 185, 186, 187, 188, 189
    vK, vV, vXo, vWo, vPf, vB2, vX, vOc, vR, vH = 190, 191, 192, 193, 194, 195, 196, 197, 198, 199
    G2, G3 = 200, 204
    W1, QM, HM = 208, 240, 244
    NV = 256

    NVF = 1 if "v0" in exp else 0
    SEQ = [("V", 15)] * NVF + [("K", t) for t in range(16)] + [("V", t) for t in range(16 - NVF)]
    def sload(n):
        kind, t = SEQ[n]
        if kind == "K": e(f"buffer_load_dwordx4 v[{K0+4*t}:{K0+4*t+3}], v{vK}, s[44:47], s99 offen nt")
        else: e(f"buffer_load_dwordx4 v[{V0+4*t}:{V0+4*t+3}], v{vV}, s[52:55], s99 offen nt")
    stamp(0)
    e("s_load_dwordx16 s[16:31], s[0:1], 0")
    e("s_load_dwordx8 s[32:39], s[0:1], 64")
    e("s_load_dwordx2 s[40:41], s[0:1], 96")
    e("v_lshrrev_b32 v1, 6, v0"); e("v_and_b32 v0, 63, v0")
    e("s_cmp_ge_u32 s2, 256"); e("v_readfirstlane_b32 s3, v1"); e("s_cbranch_scc1 L_exit")
    e("s_and_b32 s49, s2, 7"); e("s_lshr_b32 s50, s2, 6")
    e("s_lshl2_add_u32 s4, s49, s50")
    e("s_bfe_u32 s5, s2, 0x30003")
    e("s_lshr_b32 s6, s5, 2")
    e("v_lshrrev_b32 v3, 4, v0"); e(f"v_lshlrev_b32 v{vV}, 4, v0"); e("v_mov_b32 v4, 0")
    e("s_mov_b32 s47, 0x20000")
    e("s_cmp_ge_u32 s3, 4"); e("s_cbranch_scc1 L_P")
    e("s_and_b32 s7, s5, 3"); e("s_lshl2_add_u32 s98, s7, s3")
    e("v_lshlrev_b32 v6, 2, v0")
    e("s_lshl_b32 s48, s6, 5"); e("s_add_u32 s48, s48, s4"); e("s_lshl_b32 s48, s48, 6"); e("s_add_u32 s48, s48, s98")
    e(f"v_bfe_u32 v{vK}, v0, 2, 2"); e(f"v_lshlrev_b32 v{vK}, 8, v{vK}")
    e("s_lshl_b32 s48, s48, 14"); e("s_add_u32 s48, s48, 0xC0000")
    e("ds_write_b32 v6, v4")
    e(f"v_lshl_add_u32 v{vK}, v3, 6, v{vK}"); e(f"v_and_b32 v{vGr}, 3, v0"); e(f"v_lshl_add_u32 v{vK}, v{vGr}, 4, v{vK}")
    assert rotc == (5, 3, 8)
    e("s_lshl2_add_u32 s99, s98, s98"); e("s_lshl1_add_u32 s52, s4, s4"); e("s_add_u32 s99, s99, s52"); e("s_lshl3_add_u32 s99, s6, s99")
    e("s_lshl_b32 s99, s99, 10"); e("s_and_b32 s99, s99, 0x3fff")
    e("s_movk_i32 s46, 0x4000"); e("s_movk_i32 s54, 0x4000"); e("s_mov_b32 s55, 0x20000")
    e("s_waitcnt lgkmcnt(0)")
    e("s_add_u32 s52, s20, s48"); e("s_addc_u32 s53, s21, 0")
    for n in range(thr0):
        sload(n)
        if n == 0: e("s_add_u32 s44, s18, s48"); e("s_addc_u32 s45, s19, 0")
        e("s_addk_i32 s99, 0x400"); e("s_and_b32 s99, s99, 0x3fff")
    e("s_load_dword s11, s[40:41], 0")
    e("s_barrier")
    e("s_branch L_S2")
    a.label("L_P")
    e("v_and_b32 v2, 15, v0"); e(f"v_bfe_u32 v{vB}, v0, 3, 1"); e(f"v_and_b32 v{vI}, 7, v0"); e("v_mov_b32 v5, 1")
    e("s_cmp_eq_u32 s3, 4"); e("s_cbranch_scc1 L_P0")
    e("s_getpc_b64 s[58:59]")
    a.label("L_pc")
    e(f"v_mul_u32_u24 v{T0}, 0xc00, v1"); e(f"v_lshl_add_u32 v{T0}, v0, 7, v{T0}"); e(f"v_add_u32 v{T0}, {-5*0xc00 & 0xffffffff}, v{T0}")
    e(f"v_min_u32 v{T0}, L_last-L_pc, v{T0}")
    e("s_mov_b32 exec_lo, 0xffffff"); e("s_mov_b32 exec_hi, 0")
    e(f"global_load_dword v{vPf}, v{T0}, s[58:59]")
    e("s_mov_b64 exec, -1")
    e("s_waitcnt lgkmcnt(0)")
    e("s_load_dword s11, s[40:41], 0")
    e("s_barrier")
    e("s_branch L_P123")
    a.label("L_P0")
    e("s_lshl_b32 s56, s5, 19"); e("s_lshl_b32 s54, s4, 8"); e("s_add_u32 s56, s56, s54")
    e("s_lshl_b32 s57, s50, 15")
    e("s_lshl_b32 s53, s5, 7"); e("s_mov_b32 s46, 0x400000"); e("s_lshl_b32 s52, s50, 3")
    e(f"v_lshl_add_u32 v{T0}, v3, 3, v{vI}"); e(f"v_lshlrev_b32 v{T0}, 5, v{T0}"); e(f"v_lshl_add_u32 v{T0}, v{vB}, 10, v{T0}")
    e(f"v_lshlrev_b32 v{T1}, 5, v3"); e(f"v_lshl_add_u32 v{T1}, v{vB}, 10, v{T1}"); e(f"v_add_u32 v{T1}, s53, v{T1}")
    e(f"v_lshlrev_b32 v{T3}, 4, v2"); e(f"v_lshl_add_u32 v{T2}, v3, 17, v{T3}"); e(f"v_add_u32 v{T2}, s56, v{T2}")
    for m in range(4):
        e(f"v_add_u32 v{G2+m}, s52, v{T1}")
        if m < 3: e("s_add_u32 s52, s52, 8"); e("s_and_b32 s52, s52, 31")
    e("s_waitcnt lgkmcnt(0)")
    e("s_mov_b64 s[44:45], s[22:23]")
    e(f"global_load_dwordx4 v[{XS}:{XS+3}], v{T0}, s[16:17]"); e(f"global_load_dwordx4 v[{XS+4}:{XS+7}], v{T0}, s[16:17] offset:16")
    for m in range(4): e(f"global_load_dwordx2 v[{XR+2*m}:{XR+2*m+1}], v{G2+m}, s[16:17]")
    e("s_load_dword s11, s[40:41], 0")
    e("s_barrier")
    if "wqlin" in exp: e("s_lshl_b32 s57, s2, 14")
    if "wqK" in exp:
        e("s_sub_u32 s57, s48, 0x80000"); e("s_mov_b64 s[44:45], s[18:19]"); e("s_mov_b32 s46, 0x4000000")
    if "wq1k" in exp: e("s_lshr_b32 s57, s2, 3"); e("s_lshl_b32 s57, s57, 17"); e("s_lshl_b32 s52, s49, 10"); e("s_add_u32 s57, s57, s52")
    for u in range(16):
        if "wqlin" in exp or "wqK" in exp:
            e(f"buffer_load_dwordx4 v[{W0+4*u}:{W0+4*u+3}], v{vV}, s[44:47], s57 offen nt"); e("s_add_u32 s57, s57, 0x400"); continue
        if "wq1k" in exp:
            e(f"buffer_load_dwordx4 v[{W0+4*u}:{W0+4*u+3}], v{vV}, s[44:47], s57 offen nt"); e("s_add_u32 s57, s57, 0x2000"); continue
        if pw and u >= pw: e(f"s_waitcnt vmcnt({pw-1})")
        e(f"buffer_load_dwordx4 v[{W0+4*u}:{W0+4*u+3}], v{T2}, s[44:47], s57 offen nt")
        if u < 15: e("s_add_u32 s57, s57, 0x2000")
        if u % 4 == 3 and u < 15: e("s_and_b32 s57, s57, 0x1ffff")
    e("s_branch L_tile2")

    inS[0] = True
    vM, vL = DD, DD + 1
    def andt(t):
        for r in range(4): e(f"v_and_b32_dpp v{K0+4*t+r}, v{SS+t//4}, v{MM+r} row_newbcast:{4*(t%4)} {FULL}")
    def part_qk(issued):
        tags()
        stamp(1)
        if "noP" not in exp and "noqw" not in exp: ldswait("L_sq", QCNT, 4, T0)
        stamp(2)
        for t in range(4):
            e(f"s_mov_b32 exec_lo, 0x{0x000F000F << (4*t):08x}"); e("s_mov_b32 exec_hi, exec_lo")
            e(f"ds_read_b128 v[{BQ+4*t}:{BQ+4*t+3}], v{T3} offset:{LQ}")
        e("s_mov_b64 exec, -1")
        for t in range(4):
            e(f"s_waitcnt vmcnt({issued-16-NVF}) lgkmcnt({3-t})")
            for c in range(4):
                k = K0 + 4 * (4 * c + t); d = DD + 4 * c
                e(f"{MF} v[{d}:{d+3}], v[{k}:{k+3}], v[{BQ+4*t}:{BQ+4*t+3}], " + ("0" if t == 0 else f"v[{d}:{d+3}]"))
    def part_sm():
        for c in range(4): e(f"v_mov_b32_dpp v{SS+c}, v{DD+4*c} quad_perm:[0,0,0,0] {FULL}")
        for r in range(1, 4):
            for c in range(4): e(f"v_add_f32_dpp v{SS+c}, v{DD+4*c+r}, v{SS+c} quad_perm:[{r},{r},{r},{r}] {FULL}")
        e(f"v_max3_f32 v{vM}, v{SS}, v{SS+1}, v{SS+2}"); e(f"v_max_f32 v{vM}, v{vM}, v{SS+3}")
        e(f"s_mov_b32 s48, {f32(LOG2E * 128 ** -0.5)}")
        e(f"v_mov_b32 v{DD+3}, s96")
        e(f"v_max_f32_dpp v{vM}, v{vM}, v{vM} row_ror:4 {FULL}")
        e(f"v_max_f32_dpp v{vM}, v{vM}, v{vM} row_ror:8 {FULL}")
        xrow("v_max_f32", vM, T0)
        e(f"v_mul_f32 v{vM}, s48, v{vM}")
        for c in range(4): e(f"v_fma_f32 v{SS+c}, v{SS+c}, s48, -v{vM}")
        for c in range(4): e(f"v_exp_f32 v{SS+c}, v{SS+c}")
        e(f"v_add_f32 v{vL}, v{SS}, v{SS+1}"); e(f"v_add_f32 v{T0}, v{SS+2}, v{SS+3}"); e(f"v_add_f32 v{vL}, v{vL}, v{T0}")
        e(f"v_add_f32_dpp v{vL}, v{vL}, v{vL} row_ror:4 {FULL}"); e(f"v_add_f32_dpp v{vL}, v{vL}, v{vL} row_ror:8 {FULL}")
        xrow("v_add_f32", vL, T0)
        e(f"v_rcp_f32 v{vR}, v{vL}"); e(f"v_log_f32 v{T0}, v{vL}")
        for c in range(4): e(f"v_mul_f32 v{SS+c}, v{SS+c}, v{vR}")
        e(f"v_add_f32 v{DD+2}, v{vM}, v{T0}")
        for c in range(4): e(f"v_cvt_pk_bf16_f32 v{SS+c}, v{SS+c}, v{SS+c}")
        stamp(3)
    lsum = []
    def part_and(lo, hi):
        for t in range(lo, hi):
            if lsum: e(lsum.pop(0))
            andt(t)
    parts = [part_qk, lambda n: part_sm(), lambda n: part_and(0, 8), lambda n: part_and(8, 16)]
    for n in range(thr0, 32):
        t = n % 16
        if n == thr0:
            a.label("L_S2")
            e("v_and_b32 v2, 15, v0"); e("v_mov_b32 v5, 1")
            if "st1" in exp: stamp(6)
            e(f"v_lshl_add_u32 v{T0}, v3, 2, v{vGr}"); e(f"v_lshlrev_b32 v{T3}, 4, v{T0}")
            for r in range(16): e(f"v_mov_b32 v{BQ+r}, 0")
            common2()
            e("s_lshl_b32 s57, s6, 4"); e("s_add_u32 s57, s57, s98"); e("s_lshl_b32 s57, s57, 6"); e("s_lshl_b32 s51, s4, 14"); e("s_add_u32 s57, s57, s51")
            e(f"s_add_u32 s57, s57, {OP}")
            e(f"v_lshrrev_b32 v{vOff}, 1, v2"); e(f"v_lshlrev_b32 v{vOff}, 11, v{vOff}")
            e(f"v_and_b32 v{T0}, 1, v2"); e(f"v_lshl_add_u32 v{vOff}, v{T0}, 5, v{vOff}")
            e(f"v_and_b32 v{T0}, 1, v3"); e(f"v_lshl_add_u32 v{vOff}, v{T0}, 4, v{vOff}"); e(f"v_add_u32 v{vOff}, s57, v{vOff}")
            if boost:
                e("s_getreg_b32 s57, hwreg(HW_REG_XCC_ID, 0, 4)"); e(f"s_lshr_b32 s57, {bmask}, s57"); e("s_and_b32 s56, s57, 1")
        th = thr0 if n < n0 else (thrK if n < 16 else thr)
        if n >= nE: th = thrE
        if sched:
            for n_, t_ in sched:
                if n >= n_: th = t_
        if th <= n:
            if boost and n >= n0:
                e("s_cmp_lg_u32 s56, 0"); e(f"s_cbranch_scc1 L_b{n}")
                e(f"s_waitcnt vmcnt({th-1})")
                a.label(f"L_b{n}")
                e(f"s_waitcnt vmcnt({th-1+boost})")
            else: e(f"s_waitcnt vmcnt({th-1})")
        sload(n)
        if n < 31: e("s_addk_i32 s99, 0x400"); e("s_and_b32 s99, s99, 0x3fff")
        if "prog" in exp and n in (7, 13, 19, 25, 31): stamp({7: 1, 13: 2, 19: 3, 25: 4, 31: 6}[n], True)
        if n + 1 == vsig: ldsinc(VCNT)
        if n == ngo: ldsinc(PUBF)
        if n == oinit:
            e("s_mov_b32 exec_hi, 0"); e(f"global_store_dwordx4 v{vOff}, v[{BQ}:{BQ+3}], s[62:63]"); e("s_mov_b32 exec_hi, -1")
        if n >= nqk and parts: parts.pop(0)(n + 1)
    while parts: parts.pop(0)(32)
    stamp(4)
    for i_, t in enumerate([15] * NVF + list(range(16 - NVF))):
        e(f"s_waitcnt vmcnt({15-i_})")
        e(f"{MF} v[{OO}:{OO+3}], v[{K0+4*t}:{K0+4*t+3}], v[{V0+4*t}:{V0+4*t+3}], " + ("0" if i_ == 0 else f"v[{OO}:{OO+3}]"))
    e("s_mov_b32 exec_hi, 0")
    e(f"v_cvt_pk_bf16_f32 v{DD}, v{OO}, v{OO+1}"); e(f"v_cvt_pk_bf16_f32 v{DD+1}, v{OO+2}, v{OO+3}")
    e(f"global_store_dwordx4 v{vOff}, v[{DD}:{DD+3}], s[62:63] {AST}")
    ldsinc(OCNT)
    stamp(5)
    if "diag" in exp: e("s_waitcnt vmcnt(0)"); stamp(6, True)
    if "wb" in exp:
        e("s_lshr_b32 s48, s2, 3"); e("s_or_b32 s48, s48, s3"); e("s_cbranch_scc1 L_nwb"); e("buffer_wbl2 sc1"); a.label("L_nwb")
    if "noP" in exp or "P0only" in exp or "cut" in exp: e("s_branch L_end")
    verdict_wait("L_sb", T0)
    e("s_mov_b32 exec_hi, 0")
    e(f"v_mov_b32 v{DD+3}, s97")
    e(f"global_store_dwordx4 v{vOff}, v[{DD}:{DD+3}], s[40:41] sc1")
    e("s_branch L_end")

    inS[0] = False
    a.label("L_tile2")
    e("s_mov_b64 s[88:89], s[28:29]"); e("s_mov_b32 s90, 1409024"); e("s_mov_b32 s91, 0x20000")
    e("s_lshl_b32 s52, s5, 4"); e("s_add_u32 s52, s52, s50"); e(f"s_mul_i32 s52, s52, {4*2752}"); e("s_mul_i32 s53, s49, 352"); e("s_add_u32 s52, s52, s53")
    e(f"s_mov_b32 s53, {16*2752}"); e(f"v_mad_u32_u24 v{T2}, v3, s53, v{T3}")
    e(f"v_mov_b32 v{T3}, 0x7f000000"); e("v_cmp_gt_u32 vcc, 6, v2"); e(f"v_cndmask_b32 v{T3}, v{T3}, v{T2}, vcc")
    if "now1" in exp: e(f"v_mov_b32 v{T2}, 0x7f000000"); e(f"v_mov_b32 v{T3}, 0x7f000000")
    for k in range(4):
        if pw: e(f"s_waitcnt vmcnt({pw-1})")
        e(f"buffer_load_dwordx4 v[{W1+4*k}:{W1+4*k+3}], v{T2}, s[88:91], s52 offen nt")
        e(f"buffer_load_dwordx4 v[{W1+16+4*k}:{W1+16+4*k+3}], v{T3}, s[88:91], s52 offen offset:256 nt")
        if k < 3: e("s_addk_i32 s52, 2752")
    N1 = 8
    stamp(1)
    common2()
    e(f"v_mov_b32 v{T2}, 0x3f803f80")
    e(f"s_waitcnt vmcnt({20+N1})")
    sS, sQ = T0, T1
    for r in range(8):
        e(f"v_dot2_f32_bf16 v{sS}, v{XS+r}, v{T2}, " + ("0" if r == 0 else f"v{sS}"))
        e(f"v_dot2_f32_bf16 v{sQ}, v{XS+r}, v{XS+r}, " + ("0" if r == 0 else f"v{sQ}"))
    e(f"s_waitcnt vmcnt({16+N1})")
    unp = []
    for r in range(8):
        unp.append(f"v_lshlrev_b32 v{XF+2*r}, 16, v{XR+r}"); unp.append(f"v_and_b32 v{XF+2*r+1}, 0xffff0000, v{XR+r}")
    e(unp.pop()); e(unp.pop())
    for ctl in RED8:
        for v in (sS, sQ): e(f"v_add_f32_dpp v{v}, v{v}, v{v} {ctl} {FULL}")
        e(unp.pop())
    for sw in ("16", "32"):
        e(f"v_mov_b32 v{T2}, v{sS}"); e(f"v_mov_b32 v{T3}, v{sQ}"); e(unp.pop()); e(f"v_permlane{sw}_swap_b32 v{sS}, v{T2}"); e(f"v_permlane{sw}_swap_b32 v{sQ}, v{T3}")
        e(f"v_add_f32 v{sS}, v{sS}, v{T2}"); e(f"v_add_f32 v{sQ}, v{sQ}, v{T3}")
    e(f"v_mul_f32 v{sS}, {f32(1/512)}, v{sS}")
    e(f"v_mul_f32 v{T2}, v{sS}, v{sS}")
    e(f"s_mov_b32 s56, {f32(1/512)}")
    e(f"v_fma_f32 v{sQ}, v{sQ}, s56, -v{T2}"); e(f"v_max_f32 v{sQ}, 0, v{sQ}")
    e(f"v_cvt_pk_bf16_f32 v{T2}, v{sS}, v{sQ}")
    e(f"v_lshlrev_b32 v{sS}, 16, v{T2}"); e(f"v_and_b32 v{sQ}, 0xffff0000, v{T2}")
    e(f"v_add_f32 v{sQ}, {f32(1e-5)}, v{sQ}"); e(f"v_cvt_pk_bf16_f32 v{sQ}, v{sQ}, v{sQ}"); e(f"v_lshlrev_b32 v{sQ}, 16, v{sQ}")
    e(f"v_sqrt_f32 v{sQ}, v{sQ}"); e(unp.pop()); e(f"v_cvt_pk_bf16_f32 v{sQ}, v{sQ}, v{sQ}"); e(f"v_lshlrev_b32 v{sQ}, 16, v{sQ}")
    e(f"v_rcp_f32 v{sQ}, v{sQ}")
    for x in unp: e(x)
    e(f"v_mul_f32 v{sS}, v{sS}, v{sQ}")
    for u in range(16): e(f"v_fma_f32 v{XF+u}, v{XF+u}, v{sQ}, -v{sS}")
    for u in range(16): e(f"v_cvt_pk_bf16_f32 v{XF+u}, v{XF+u}, v{XF+u}")
    e("s_lshl_b32 s55, s4, 3"); e("s_add_u32 s55, s55, s5"); e("s_lshl_b32 s55, s55, 10"); e(f"s_add_u32 s55, s55, {QP}"); e(f"v_add_u32 v{vOff2}, s55, v{vV}")
    e("s_lshl_b32 s55, s5, 2"); e("s_add_u32 s55, s55, s50"); e("s_lshl_b32 s55, s55, 7"); e(f"s_mul_i32 s54, s49, {11*4096}"); e("s_add_u32 s55, s55, s54"); e(f"s_add_u32 s55, s55, {HP}")
    e(f"v_lshrrev_b32 v{vH}, 1, v2"); e(f"v_lshlrev_b32 v{vH}, 12, v{vH}"); e(f"v_lshrrev_b32 v{T0}, 1, v3"); e(f"v_lshl_add_u32 v{vH}, v{T0}, 6, v{vH}")
    e(f"v_and_b32 v{T0}, 1, v2"); e(f"v_lshl_add_u32 v{vH}, v{T0}, 5, v{vH}"); e(f"v_and_b32 v{T0}, 1, v3"); e(f"v_lshl_add_u32 v{vH}, v{T0}, 4, v{vH}")
    e(f"v_add_u32 v{vH}, s55, v{vH}"); e(f"v_add_u32 v{vR}, 0x8000, v{vH}")
    for u in range(17):
        if u < 16:
            for r in range(4): e(f"v_and_b32 v{A0+4*u+r}, v{XF+u}, v{MM+r}")
        if u >= 1:
            w = u - 1
            e(f"s_waitcnt vmcnt({15-w+N1})")
            e(f"{MF} v[{QM}:{QM+3}], v[{A0+4*w}:{A0+4*w+3}], v[{W0+4*w}:{W0+4*w+3}], " + ("0" if w == 0 else f"v[{QM}:{QM+3}]"))
    tags()
    tag4(QM, QM, 92)
    if "nost" in exp: e("s_branch L_end")
    e(f"global_store_dwordx4 v{vOff2}, v[{QM}:{QM+3}], s[62:63] {AST}")
    stamp(2)
    e("s_waitcnt vmcnt(1)")
    for k in range(4):
        for hf in range(2):
            d = HM + 4 * hf; w = W1 + 16 * hf + 4 * k
            e(f"{MF} v[{d}:{d+3}], v[{A0+4*k}:{A0+4*k+3}], v[{w}:{w+3}], " + ("0" if k == 0 else f"v[{d}:{d+3}]"))
    tag4(HM, HM, 92); tag4(HM + 4, HM + 4, 92)
    e(f"global_store_dwordx4 v{vH}, v[{HM}:{HM+3}], s[62:63] {AST}")
    e("s_mov_b32 exec_lo, 0x003f003f"); e("s_mov_b32 exec_hi, 0x003f003f")
    e(f"global_store_dwordx4 v{vR}, v[{HM+4}:{HM+7}], s[62:63] {AST}")
    ldsinc(QCNT)
    ldsinc(PUBF)
    if "woearly" in exp: woloads()
    stamp(3)
    if "P0only" in exp: e("s_branch L_end")
    if "cut" in exp: e("s_branch L_wo")
    e("s_mov_b32 s43, 0x40000")
    a.label("L_v0")
    e("s_sleep 2")
    e(f"ds_read_b32 v{T0}, v4 offset:{VERD}")
    e("s_sub_u32 s43, s43, 1"); e("s_cbranch_scc1 L_end")
    e("s_waitcnt lgkmcnt(0)")
    e(f"v_readfirstlane_b32 s48, v{T0}")
    e("s_cmp_eq_u32 s48, 0"); e("s_cbranch_scc1 L_v0")
    e("s_cmp_eq_u32 s48, 1"); e("s_cbranch_scc1 L_wo")
    tag4(QM, QM, 84); tag4(HM, HM, 84); tag4(HM + 4, HM + 4, 84)
    e(f"global_store_dwordx4 v{vOff2}, v[{QM}:{QM+3}], s[40:41] sc1")
    e(f"global_store_dwordx4 v{vH}, v[{HM}:{HM+3}], s[40:41] sc1")
    e("s_mov_b32 exec_lo, 0x003f003f"); e("s_mov_b32 exec_hi, 0x003f003f")
    e(f"global_store_dwordx4 v{vR}, v[{HM+4}:{HM+7}], s[40:41] sc1")
    e("s_mov_b64 exec, -1")
    e("s_branch L_wo")

    a.label("L_P123")
    if "P0only" in exp: e("s_branch L_end")
    common2()
    if "woearly" in exp: woloads()
    if "sfill" in exp:
        e("s_cmp_eq_u32 s3, 5"); e("s_cbranch_scc1 L_sf1")
        e("s_cmp_eq_u32 s3, 6"); e("s_cbranch_scc1 L_sf2")
        if "sfo" in exp:
            e("s_lshl_b32 s52, s5, 8"); e("s_lshl_b32 s53, s4, 14"); e("s_add_u32 s52, s52, s53"); e("s_add_u32 s52, s62, s52"); e("s_addc_u32 s53, s63, 0")
            for k in range(16): e(f"s_load_dword s54, s[52:53], {OP + 2048*(k>>1) + 128*(k&1)}")
        e("s_branch L_sf3")
        a.label("L_sf1")
        if "sfq" in exp:
            e("s_lshl3_add_u32 s52, s4, s5"); e("s_lshl_b32 s52, s52, 10"); e("s_add_u32 s52, s62, s52"); e("s_addc_u32 s53, s63, 0")
            for k in range(8): e(f"s_load_dword s54, s[52:53], {QP + 128*k}")
        e("s_branch L_sf3")
        a.label("L_sf2")
        if "sfq" in exp:
            e("s_lshl2_add_u32 s52, s5, s50"); e("s_lshl_b32 s52, s52, 7"); e(f"s_mul_i32 s53, s49, {11*4096}"); e("s_add_u32 s52, s52, s53"); e(f"s_add_u32 s52, s52, {HP}"); e("s_add_u32 s52, s62, s52"); e("s_addc_u32 s53, s63, 0")
            for k in range(11): e(f"s_load_dword s54, s[52:53], {4096*k}")
        a.label("L_sf3")
    tags()
    e("s_cmp_lg_u32 s3, 5"); e("s_cbranch_scc1 L_P23")
    if "sty" in exp:
        e("s_lshl_b32 s52, s9, 6"); e("s_add_u32 s52, s52, s10"); e(f"s_mul_i32 s52, s52, {YS}"); e(f"s_add_u32 s52, s52, {YP}")
        e("s_add_u32 s52, s40, s52"); e("s_addc_u32 s53, s41, 0")
        for k in range(8): e(f"s_load_dword s54, s[52:53], {128*k}")
        if "stf" in exp:
            for k in range(8): e(f"s_load_dword s54, s[52:53], {FP-YP+128*k}")
        e("s_waitcnt lgkmcnt(0)")
    if "noP1" in exp: e("s_branch L_wo")
    e("s_lshl_b32 s52, s4, 13"); e("s_lshl_b32 s53, s6, 9"); e("s_add_u32 s52, s52, s53"); e(f"s_add_u32 s52, s52, {QP}")
    e(f"v_lshrrev_b32 v{vOff}, 2, v2"); e(f"v_lshlrev_b32 v{vOff}, 11, v{vOff}")
    e(f"v_and_b32 v{T0}, 3, v0")
    e(f"v_lshl_add_u32 v{T3}, v3, 2, v{T0}"); e(f"v_lshlrev_b32 v{T3}, 4, v{T3}")
    e(f"v_add3_u32 v{vOff}, v{vOff}, v{T3}, s52")
    ldswait("L_qp", PUBF, 5, T0, sleep=2)
    stamp(1)
    qloads = lambda R, B: [f"global_load_dwordx4 v[{R+4*i}:{R+4*i+3}], v{vOff}, {B} offset:{o} {QH}" for i, o in enumerate((0, 256, 1024, 1280))]
    for k in range(1, qpipe):
        e(f"s_sleep {qdelay}")
        for l in qloads(W0 + 16 * k, "s[62:63] {AST}"): e(l)
    for k in range(1, qpipe):
        e(f"s_waitcnt vmcnt({4*(qpipe-1-k)})")
        R = W0 + 16 * k
        check([R, R + 4, R + 8, R + 12], T0, 92)
        e(f"s_cbranch_vccnz L_q{k}")
        for r in range(8): e(f"v_add_f32 v{W0+r}, v{R+r}, v{R+8+r}")
        e("s_branch L_qok")
        a.label(f"L_q{k}")
    pollhead("L_pq")
    for l in qloads(W0, "s[60:61]"): e(l)
    seltags()
    e("s_cbranch_scc1 L_pqA")
    e(f"v_mov_b32 v{T0}, 2"); e(f"ds_write_b32 v4, v{T0} offset:{VERD}")
    a.label("L_pqA")
    e("s_sub_u32 s43, s43, 1"); e("s_cbranch_scc1 L_end")
    e("s_waitcnt vmcnt(0)")
    check([W0, W0 + 4, W0 + 8, W0 + 12], T0)
    e("s_cbranch_vccnz L_pq")
    for r in range(8): e(f"v_add_f32 v{W0+r}, v{W0+r}, v{W0+8+r}")
    a.label("L_qok")
    for n in (4, 8):
        for r in range(8): e(f"v_add_f32_dpp v{W0+r}, v{W0+r}, v{W0+r} row_ror:{n} {FULL}")
    for r in range(4): e(f"v_cvt_pk_bf16_f32 v{W0+8+r}, v{W0+2*r}, v{W0+2*r+1}")
    e(f"ds_write_b128 v{T3}, v[{W0+8}:{W0+11}] offset:{LQ}")
    ldsinc(QCNT)
    stamp(3)
    e("s_branch L_wo")

    a.label("L_P23")
    if "pt" in exp:
        e("s_cmp_lg_u32 s3, 6"); e("s_cbranch_scc1 L_npt")
        e("s_mov_b64 exec, 1")
        e("s_lshl_b32 s52, s10, 16"); e(f"v_mov_b32 v{T0}, s52")
        e(f"global_load_dword v{G2}, v{T0}, s[24:25] nt")
        for i_, b_ in enumerate(("s[32:33]", "s[36:37]", "s[40:41]", "s[62:63] {AST}")): e(f"global_load_dword v{G2+1+i_}, v4, {b_}")
        e("s_mov_b64 exec, -1")
        a.label("L_npt")
    ldsinc(QCNT)
    e("s_and_b32 s52, s10, 7"); e("s_mul_i32 s51, s49, 11"); e("s_lshr_b32 s58, s52, 1"); e("s_add_u32 s58, s58, s51"); e("s_add_u32 s58, s58, 8"); e("s_add_u32 s51, s51, s52")
    e("s_cmp_lt_u32 s52, 6"); e("s_cselect_b32 s58, s58, 86")
    e("s_bitcmp1_b32 s52, 0"); e("s_cselect_b32 s56, 0, -1"); e("s_cselect_b32 s57, -1, 0")
    e("s_cmp_eq_u32 s3, 7"); e("s_cselect_b32 s51, s51, s58"); e("s_cselect_b64 s[56:57], -1, s[56:57]")
    if "noP23" in exp: e("s_branch L_wo")
    e("s_cmp_ge_u32 s51, 86"); e("s_cbranch_scc1 L_wo")
    W2 = 56
    for r in range(16): e(f"v_mov_b32 v{W2+r}, 0"); e(f"v_mov_b32 v{A0+16+r}, 0")
    e(f"v_lshlrev_b32 v{vWo}, 12, v3"); e(f"v_lshl_add_u32 v{vWo}, v2, 4, v{vWo}"); e("s_lshl_b32 s53, s9, 8"); e("s_lshl_b32 s55, s51, 14"); e("s_add_u32 s53, s53, s55"); e(f"v_add_u32 v{vWo}, s53, v{vWo}")
    e("s_lshl_b32 s52, s51, 5"); e(f"v_lshlrev_b32 v{T3}, 3, v3"); e(f"v_add_u32 v{T3}, s52, v{T3}")
    e(f"global_load_dwordx2 v[{XS}:{XS+1}], v{T3}, s[30:31]")
    e("s_lshl_b32 s52, s51, 12"); e(f"s_add_u32 s52, s52, {HP}")
    e(f"v_lshlrev_b32 v{vOff}, 7, v{vI}"); e(f"v_lshl_add_u32 v{vOff}, v{vB}, 6, v{vOff}"); e(f"v_lshl_add_u32 v{vOff}, v3, 4, v{vOff}"); e(f"v_add_u32 v{vOff}, s52, v{vOff}")
    w2l = [f"global_load_dwordx4 v[{W2+4*u}:{W2+4*u+3}], v{vWo}, s[32:33] offset:{1024*u}" + ("" if "w2plain" in exp else " nt") for u in range(4)]
    if "w2early" in exp:
        e("s_mov_b64 exec, s[56:57]")
        for l in w2l: e(l)
        e("s_mov_b64 exec, -1")
    if "w2mid" in exp:
        ldswait("L_fq0", QCNT, 3, T0, sleep=2)
        e("s_mov_b64 exec, s[56:57]")
        for l in w2l: e(l)
        e("s_mov_b64 exec, -1")
    ldswait("L_fq", PUBF, 5, T0, sleep=2)
    e("s_mov_b64 exec, s[56:57]")
    if not any(x in exp for x in ("w2early", "w2mid", "w2late")):
        for l in w2l: e(l)
    stamp(1)
    H = W0
    if "nohp" in exp: e("s_waitcnt vmcnt(0)"); e("s_branch L_hok")
    pollhead("L_ph")
    for k in range(4): e(f"global_load_dwordx4 v[{H+4*k}:{H+4*k+3}], v{vOff}, s[60:61] offset:{1024*k} {QH}")
    seltags()
    e("s_cbranch_scc1 L_phA")
    e(f"v_mov_b32 v{T0}, 2"); e(f"ds_write_b32 v4, v{T0} offset:{VERD}")
    a.label("L_phA")
    e("s_sub_u32 s43, s43, 1"); e("s_cbranch_scc1 L_end")
    e("s_waitcnt vmcnt(0)")
    check([H, H + 4, H + 8, H + 12], T0)
    e("s_cbranch_vccnz L_ph")
    a.label("L_hok")
    e("s_mov_b64 exec, 1"); e(f"ds_max_u32 v4, v5 offset:{VERD}"); e("s_mov_b64 exec, s[56:57]")
    stamp(2)
    if "w2late" in exp:
        for l in w2l: e(l)
    if "wo23" in exp:
        e("s_mov_b64 exec, -1"); woloads(); e("s_mov_b32 s59, 1"); e("s_mov_b64 exec, s[56:57]")
    for r in range(8): e(f"v_add_f32 v{H+r}, v{H+r}, v{H+8+r}")
    for r in range(4): e(f"v_add_f32 v{H+r}, v{H+r}, v{H+4+r}")
    e(f"v_lshlrev_b32 v{H+4}, 16, v{XS}"); e(f"v_and_b32 v{H+5}, 0xffff0000, v{XS}")
    red8("v_add_f32", [H, H + 1, H + 2, H + 3])
    e(f"v_lshlrev_b32 v{H+6}, 16, v{XS+1}"); e(f"v_and_b32 v{H+7}, 0xffff0000, v{XS+1}")
    for u in range(4): e(f"v_add_f32 v{H+u}, v{H+u}, v{H+4+u}")
    for u in range(4): e(f"v_max_f32 v{H+u}, 0, v{H+u}")
    for u in range(4): e(f"v_mul_f32 v{H+u}, v{H+u}, v{H+u}")
    for u in range(4): e(f"v_cvt_pk_bf16_f32 v{H+u}, v{H+u}, v{H+u}")
    for u in range(4):
        for r in range(4): e(f"v_and_b32 v{A0+16+4*u+r}, v{H+u}, v{MM+r}")
    e("s_mov_b64 exec, -1")
    if "w2late" in exp: e("s_waitcnt vmcnt(4)" if "wo23" in exp else "s_waitcnt vmcnt(0)")
    for u in range(4): e(f"{MF} v[{PD}:{PD+3}], v[{A0+16+4*u}:{A0+16+4*u+3}], v[{W2+4*u}:{W2+4*u+3}], " + ("0" if u == 0 else f"v[{PD}:{PD+3}]"))
    if "perm" in exp:
        perm()
        e("s_lshl_b32 s52, s3, 10"); e("s_and_b32 s52, s52, 1024"); e(f"v_add_u32 v{T2}, s52, v{vV}")
        e(f"ds_write_b128 v{T2}, v[{PD}:{PD+3}] offset:{LF}")
        e("s_cmp_lt_u32 s58, 86"); e("s_cbranch_scc1 L_f2u")
        e(f"ds_read_b128 v[{PD}:{PD+3}], v{vH} offset:{LF+1024}")
        e("s_waitcnt lgkmcnt(0)")
        e("s_branch L_f1")
        a.label("L_f2u")
        e("s_mov_b64 exec, 1"); e(f"ds_add_rtn_u32 v{T0}, v4, v5 offset:{FCNT}")
        e("s_waitcnt lgkmcnt(0)")
        e(f"v_cmp_ne_u32 vcc, 1, v{T0}"); e("s_mov_b64 exec, -1"); e("s_cbranch_vccnz L_wo")
        e(f"ds_read_b128 v[{H}:{H+3}], v{vH} offset:{LF}"); e(f"ds_read_b128 v[{PD}:{PD+3}], v{vH} offset:{LF+1024}")
        e("s_waitcnt lgkmcnt(0)")
        for r in range(4): e(f"v_add_f32 v{PD+r}, v{PD+r}, v{H+r}")
    else:
        e("s_cmp_ge_u32 s58, 86"); e("s_cbranch_scc1 L_f1")
        e("s_lshl_b32 s52, s3, 10"); e("s_and_b32 s52, s52, 1024"); e(f"v_add_u32 v{T2}, s52, v{vV}"); e(f"v_xor_b32 v{T3}, 1024, v{T2}")
        e(f"ds_write_b128 v{T2}, v[{PD}:{PD+3}] offset:{LF}")
        e("s_mov_b64 exec, 1"); e(f"ds_add_rtn_u32 v{T0}, v4, v5 offset:{FCNT}")
        e("s_waitcnt lgkmcnt(0)")
        e(f"v_cmp_ne_u32 vcc, 1, v{T0}"); e("s_mov_b64 exec, -1"); e("s_cbranch_vccnz L_wo")
        e(f"ds_read_b128 v[{H}:{H+3}], v{T3} offset:{LF}")
        e("s_waitcnt lgkmcnt(0)")
        for r in range(4): e(f"v_add_f32 v{PD+r}, v{PD+r}, v{H+r}")
    a.label("L_f1")
    e("s_lshl_b32 s52, s9, 6"); e("s_add_u32 s52, s52, s10"); e(f"s_mul_i32 s52, s52, {YS}"); e(f"s_add_u32 s52, s52, {FP}")
    e(f"v_add_u32 v{T1}, s52, v{vV}")
    tag4(PD, PD, 84)
    if "fearly" not in exp: ldswait("L_fv", VCNT, 4, T0, sleep=2)
    if "nofst" not in exp: e(f"global_store_dwordx4 v{T1}, v[{PD}:{PD+3}], s[40:41] {FST}")
    if "yinit" in exp:
        for r in range(4): e(f"v_mov_b32 v{H+r}, 0")
        e(f"v_add_u32 v{T1}, {YP-FP & 0xffffffff}, v{T1}")
        e(f"global_store_dwordx4 v{T1}, v[{H}:{H+3}], s[40:41] sc1")
    stamp(3)

    a.label("L_wo")
    if "nowo" in exp: e("s_branch L_end")
    e(f"v_lshlrev_b32 v{vWo}, 12, v3"); e(f"v_lshl_add_u32 v{vWo}, v2, 4, v{vWo}"); e("s_lshl_b32 s53, s9, 8"); e(f"v_add_u32 v{vWo}, s53, v{vWo}")
    e("s_sub_u32 s51, s3, 4")
    e("s_lshl_b32 s52, s10, 16"); e("s_lshl_b32 s53, s51, 14"); e("s_add_u32 s52, s52, s53")
    e("s_add_u32 s24, s24, s52"); e("s_addc_u32 s25, s25, 0")
    e("s_lshl_b32 s52, s8, 2"); e("s_add_u32 s52, s52, s51"); e("s_lshl_b32 s52, s52, 11"); e("s_lshl_b32 s53, s4, 14"); e("s_add_u32 s52, s52, s53"); e(f"s_add_u32 s52, s52, {OP}")
    e(f"v_lshl_add_u32 v{vOff}, v{vB}, 4, v{vI}"); e(f"v_lshlrev_b32 v{vOff}, 6, v{vOff}"); e(f"v_lshl_add_u32 v{vOff}, v3, 4, v{vOff}"); e(f"v_add_u32 v{vOff}, s52, v{vOff}")
    e("s_lshl_b32 s52, s51, 10"); e(f"v_add_u32 v{T2}, s52, v{vV}")
    e("s_lshl_b32 s52, s9, 6"); e("s_add_u32 s52, s52, s10"); e(f"s_mul_i32 s52, s52, {YS}"); e(f"s_add_u32 s52, s52, {YP}")
    e(f"v_add_u32 v{vGr}, s52, v{vV}")
    e(f"v_and_b32 v{vOc}, 1, v3"); e(f"v_lshrrev_b32 v{T0}, 1, v3"); e(f"v_lshl_or_b32 v{vOc}, v{vOc}, 1, v{T0}")
    if "cmap" in exp:
        perm()
        e("s_lshr_b32 s54, s49, 1"); e("s_and_b32 s55, s49, 1"); e("s_lshl2_add_u32 s56, s5, s50" if "rmap" in exp else "s_lshr_b32 s56, s2, 3")
        e("s_lshl_b32 s52, s56, 2"); e("s_lshl_b32 s53, s54, 7"); e("s_add_u32 s52, s52, s53")
        e(f"v_add_lshl_u32 v{vOc}, v{vOc}, s52, 1")
        e("s_lshl_b32 s52, s55, 10"); e(f"v_add_u32 v{vXo}, s52, v{vOc}")
        e(f"s_mul_i32 s52, s54, {64*YS}"); e("s_lshl_b32 s53, s55, 9"); e("s_add_u32 s52, s52, s53"); e("s_lshl4_add_u32 s52, s56, s52"); e(f"s_add_u32 s52, s52, {YP}")
    else:
        if "perm" in exp: e("s_and_b32 s52, s10, 31"); perm()
        else: e("s_and_b32 s52, s10, 15"); e("s_lshl_b32 s52, s52, 1"); e("s_bfe_u32 s53, s10, 0x10004"); e("s_add_u32 s52, s52, s53")
        e("s_lshl_b32 s52, s52, 2"); e("s_lshl_b32 s53, s9, 7"); e("s_add_u32 s52, s52, s53")
        e(f"v_add_lshl_u32 v{vOc}, v{vOc}, s52, 1")
        e("s_lshr_b32 s52, s10, 5"); e("s_lshl_b32 s52, s52, 10"); e(f"v_add_u32 v{vXo}, s52, v{vOc}")
        e(f"s_mul_i32 s52, s9, {64*YS}"); e("s_lshl_b32 s53, s10, 4"); e("s_add_u32 s52, s52, s53"); e(f"s_add_u32 s52, s52, {YP}")
    e(f"v_mul_u32_u24 v{vK}, {YS}, v0"); e(f"v_add_u32 v{vK}, s52, v{vK}"); e(f"v_add_u32 v{T3}, {FP-YP}, v{vK}")
    if "nosmall" not in exp:
        e(f"global_load_ushort v{vB2}, v{vOc}, s[34:35]")
        e(f"global_load_ushort v{vX}, v{vXo}, s[16:17]")
    ldswait("L_pv", VCNT, 4, T0, sleep=2)
    WO = 40
    if "woearly" not in exp:
        e("s_cmp_lg_u32 s59, 0"); e("s_cbranch_scc1 L_wod")
        for u in range(4): e(f"global_load_dwordx4 v[{WO+4*u}:{WO+4*u+3}], v{vWo}, s[24:25] offset:{1024*u} nt")
        a.label("L_wod")
    if "ofill" in exp:
        if "ofq" in exp:
            e("s_lshl_b32 s52, s9, 1"); e("s_lshl_b32 exec_lo, 0x0101, s52"); e("s_mov_b32 exec_hi, 0")
        e(f"global_load_dword v{XF}, v{vOff}, s[62:63] sc1 nt"); e(f"global_load_dword v{XF+4}, v{vOff}, s[62:63] offset:512 sc1 nt")
        e("s_mov_b64 exec, -1")
    if "cut" in exp: e("s_waitcnt vmcnt(0)"); e("s_branch L_end")
    if "yfill" in exp:
        e("s_cmp_lg_u32 s3, 5"); e("s_cbranch_scc1 L_nyf")
        e("s_and_b32 s52, s56, 7"); e("s_lshl_b32 s52, s52, 3"); e("s_lshl_b64 exec, 0xff, s52")
        e(f"global_load_dword v{G3}, v{vK}, s[40:41] {YFILL}")
        e("s_mov_b64 exec, -1")
        a.label("L_nyf")
    if "diag" in exp: stamp(1); e("s_waitcnt vmcnt(0)"); stamp(2)
    if "prio" in exp: e("s_setprio 2")
    if "noog" not in exp: ldswait("L_pw", OCNT, og, T0, sleep=0)
    stamp(4)
    O1, O2, S1, S2 = XS, XS + 4, XF, XF + 4
    if osl:
        e("s_movk_i32 s43, 0x3fff"); e("s_branch L_po"); a.label("L_po_s"); e(f"s_sleep {osl}"); a.label("L_po")
        e("s_and_b32 s48, s43, 63"); e("s_cselect_b64 s[60:61], s[62:63], s[40:41]")
    else: pollhead("L_po")
    e(f"global_load_dwordx4 v[{S1}:{S1+3}], v{vOff}, s[60:61] {OF}"); e(f"global_load_dwordx4 v[{S2}:{S2+3}], v{vOff}, s[60:61] offset:512 {OF}")
    e("s_cselect_b32 s42, s96, s97")
    e("s_sub_u32 s43, s43, 1"); e("s_cbranch_scc1 L_end")
    e("s_waitcnt vmcnt(0)")
    if "omask" in exp:
        e(f"v_cmp_ne_u32 vcc, s42, v{S1+3}"); e(f"v_cmp_ne_u32 s[58:59], s42, v{S2+3}")
        e(f"v_max_f32 v{T0}, v{S1+2}, v{S2+2}")
        e("s_or_b64 exec, vcc, s[58:59]")
        e("s_cbranch_scc1 " + ("L_po_s" if osl else "L_po"))
        e("s_mov_b64 exec, -1")
        e(f"v_max_f32_dpp v{T0}, v{T0}, v{T0} {RED8[0]} {FULL}")
        e(f"v_lshlrev_b32 v{O1+2}, 16, v{S1+1}"); e(f"v_and_b32 v{O1+3}, 0xffff0000, v{S1+1}")
    else:
        e(f"v_max_f32 v{T0}, v{S1+2}, v{S2+2}")
        e(f"v_cmp_ne_u32 vcc, s42, v{S1+3}"); e(f"v_cmp_ne_u32 s[58:59], s42, v{S2+3}")
        e(f"v_max_f32_dpp v{T0}, v{T0}, v{T0} {RED8[0]} {FULL}")
        e("s_or_b64 vcc, vcc, s[58:59]")
        e("s_cbranch_scc1 " + ("L_po_s" if osl else "L_po"))
    stamp(5)
    e(f"v_max_f32_dpp v{T0}, v{T0}, v{T0} {RED8[1]} {FULL}")
    e(f"v_lshlrev_b32 v{O1}, 16, v{S1}"); e(f"v_and_b32 v{O1+1}, 0xffff0000, v{S1}")
    e(f"v_max_f32_dpp v{T0}, v{T0}, v{T0} {RED8[2]} {FULL}")
    e(f"v_sub_f32 v{S1+3}, v{S1+2}, v{T0}"); e(f"v_sub_f32 v{S2+3}, v{S2+2}, v{T0}")
    e(f"v_exp_f32 v{S1+3}, v{S1+3}"); e(f"v_exp_f32 v{S2+3}, v{S2+3}")
    if "omask" not in exp: e(f"v_lshlrev_b32 v{O1+2}, 16, v{S1+1}"); e(f"v_and_b32 v{O1+3}, 0xffff0000, v{S1+1}")
    e(f"v_add_f32 v{T0}, v{S1+3}, v{S2+3}")
    e(f"v_lshlrev_b32 v{O2}, 16, v{S2}"); e(f"v_and_b32 v{O2+1}, 0xffff0000, v{S2}")
    e(f"v_add_f32_dpp v{T0}, v{T0}, v{T0} {RED8[0]} {FULL}")
    e(f"v_lshlrev_b32 v{O2+2}, 16, v{S2+1}"); e(f"v_and_b32 v{O2+3}, 0xffff0000, v{S2+1}")
    e(f"v_add_f32_dpp v{T0}, v{T0}, v{T0} {RED8[1]} {FULL}")
    if "pk" in exp:
        e(f"v_pk_mul_f32 v[{O1}:{O1+1}], v[{O1}:{O1+1}], v[{S1+2}:{S1+3}] op_sel:[0,1] op_sel_hi:[1,1]")
        e(f"v_pk_mul_f32 v[{O1+2}:{O1+3}], v[{O1+2}:{O1+3}], v[{S1+2}:{S1+3}] op_sel:[0,1] op_sel_hi:[1,1]")
        e(f"v_add_f32_dpp v{T0}, v{T0}, v{T0} {RED8[2]} {FULL}")
        e(f"v_pk_fma_f32 v[{O1}:{O1+1}], v[{O2}:{O2+1}], v[{S2+2}:{S2+3}], v[{O1}:{O1+1}] op_sel:[0,1,0] op_sel_hi:[1,1,1]")
        e(f"v_rcp_f32 v{T0}, v{T0}")
        e(f"v_pk_fma_f32 v[{O1+2}:{O1+3}], v[{O2+2}:{O2+3}], v[{S2+2}:{S2+3}], v[{O1+2}:{O1+3}] op_sel:[0,1,0] op_sel_hi:[1,1,1]")
        e(f"v_pk_mul_f32 v[{O1}:{O1+1}], v[{O1}:{O1+1}], v[{T0}:{T0+1}] op_sel:[0,0] op_sel_hi:[1,0]")
        e(f"v_pk_mul_f32 v[{O1+2}:{O1+3}], v[{O1+2}:{O1+3}], v[{T0}:{T0+1}] op_sel:[0,0] op_sel_hi:[1,0]")
    else:
        for u in range(2): e(f"v_mul_f32 v{O1+u}, v{O1+u}, v{S1+3}")
        e(f"v_add_f32_dpp v{T0}, v{T0}, v{T0} {RED8[2]} {FULL}")
        for u in range(2, 4): e(f"v_mul_f32 v{O1+u}, v{O1+u}, v{S1+3}")
        e(f"v_rcp_f32 v{T0}, v{T0}")
        for u in range(4): e(f"v_fmac_f32 v{O1+u}, v{O2+u}, v{S2+3}")
        for u in range(4): e(f"v_mul_f32 v{O1+u}, v{O1+u}, v{T0}")
    red8("v_add_f32", [O1, O1 + 1, O1 + 2, O1 + 3])
    for u in range(4): e(f"v_cvt_pk_bf16_f32 v{O1+u}, v{O1+u}, v{O1+u}")
    for u in range(5):
        if u < 4:
            for r in range(4): e(f"v_and_b32 v{A0+4*u+r}, v{O1+u}, v{MM+r}")
        if u >= 1:
            w = u - 1
            e(f"{MF} v[{PD}:{PD+3}], v[{A0+4*w}:{A0+4*w+3}], v[{WO+4*w}:{WO+4*w+3}], " + ("0" if w == 0 else f"v[{PD}:{PD+3}]"))
    e(f"ds_write_b128 v{T2}, v[{PD}:{PD+3}] offset:{LY}")
    e("s_mov_b64 exec, 1"); e(f"ds_add_rtn_u32 v{T0}, v4, v5 offset:{YCNT}")
    if "spec" in exp:
        e("s_mov_b64 exec, -1")
        for w in range(4): e(f"ds_read_b128 v[{W0+4*w}:{W0+4*w+3}], v{vH} offset:{LY+1024*w}")
        e("s_waitcnt lgkmcnt(4)")
        e(f"v_readfirstlane_b32 s48, v{T0}"); e("s_cmp_lg_u32 s48, 3"); e("s_cbranch_scc1 L_end")
    else:
        e("s_waitcnt lgkmcnt(0)")
        e(f"v_cmp_ne_u32 vcc, 3, v{T0}"); e("s_mov_b64 exec, -1"); e("s_cbranch_vccnz L_end")
        for w in range(4): e(f"ds_read_b128 v[{W0+4*w}:{W0+4*w+3}], v{vH if 'perm' in exp else vV} offset:{LY+1024*w}")
    if "pk" in exp:
        e("s_waitcnt lgkmcnt(2)")
        for r in (0, 2): e(f"v_pk_add_f32 v[{W0+r}:{W0+r+1}], v[{W0+r}:{W0+r+1}], v[{W0+4+r}:{W0+5+r}]")
        e("s_waitcnt lgkmcnt(0)")
        for r in (0, 2): e(f"v_pk_add_f32 v[{W0+8+r}:{W0+9+r}], v[{W0+8+r}:{W0+9+r}], v[{W0+12+r}:{W0+13+r}]")
        for r in (0, 2): e(f"v_pk_add_f32 v[{W0+r}:{W0+r+1}], v[{W0+r}:{W0+r+1}], v[{W0+8+r}:{W0+9+r}]")
    else:
        e("s_waitcnt lgkmcnt(2)")
        for r in range(4): e(f"v_add_f32 v{W0+r}, v{W0+r}, v{W0+4+r}")
        e("s_waitcnt lgkmcnt(0)")
        for r in range(4): e(f"v_add_f32 v{W0+8+r}, v{W0+8+r}, v{W0+12+r}")
        for r in range(4): e(f"v_add_f32 v{W0+r}, v{W0+r}, v{W0+8+r}")
    tag4(W0, W0, 84)
    e(f"global_store_dwordx4 v{vGr}, v[{W0}:{W0+3}], s[40:41] {YST}")
    stamp(6)
    def red64(G):
        e(f"v_permlane32_swap_b32 v{G}, v{G+1}"); e(f"v_permlane32_swap_b32 v{G+2}, v{G+3}")
        e(f"v_add_f32 v{G}, v{G}, v{G+1}"); e(f"v_add_f32 v{G+2}, v{G+2}, v{G+3}")
        e(f"v_permlane16_swap_b32 v{G}, v{G+2}"); e(f"v_add_f32 v{G}, v{G}, v{G+2}")
        for n in (8, 4, 2, 1): e(f"v_add_f32_dpp v{G}, v{G}, v{G} row_ror:{n} {FULL}")
    e("s_movk_i32 s43, 0x3fff")
    a.label("L_pf")
    e(f"global_load_dwordx4 v[{G2}:{G2+3}], v{T3}, s[40:41] {FF_}")
    if "fy" in exp:
        if fyd: e(f"s_sleep {fyd}")
        e(f"global_load_dwordx4 v[{G3}:{G3+3}], v{vK}, s[40:41] {YF}")
    e("s_sub_u32 s43, s43, 1"); e("s_cbranch_scc1 L_end")
    e("s_waitcnt vmcnt(1)" if "fy" in exp else "s_waitcnt vmcnt(0)")
    check([G2], T0, 84)
    e("s_cbranch_vccnz L_pf")
    if "fy" not in exp: e(f"global_load_dwordx4 v[{G3}:{G3+3}], v{vK}, s[40:41] {YF}")
    if "diag2" in exp: stamp(1)
    red64(G2)
    e(f"v_lshlrev_b32 v{vB2}, 16, v{vB2}"); e(f"v_lshlrev_b32 v{vX}, 16, v{vX}")
    e(f"v_add_f32 v{vB2}, v{G2}, v{vB2}")
    e(f"v_mul_f32 v{T0}, {f32(-LOG2E)}, v{vB2}"); e(f"v_exp_f32 v{T0}, v{T0}"); e(f"v_add_f32 v{T0}, 1.0, v{T0}")
    e(f"v_rcp_f32 v{T0}, v{T0}"); e("s_movk_i32 s43, 0x3fff"); e(f"v_mul_f32 v{vB2}, v{vB2}, v{T0}")
    if "ymask" in exp:
        GC = W0 + 16
        e("s_branch L_py_in")
        a.label("L_py")
        if ysl: e(f"s_sleep {ysl}")
        e(f"global_load_dwordx4 v[{G3}:{G3+3}], v{vK}, s[40:41] {YF}")
        e("s_sub_u32 s43, s43, 1"); e("s_cbranch_scc1 L_end")
        a.label("L_py_in")
        e("s_waitcnt vmcnt(0)")
        check([G3], T0, 84)
        e("s_and_b64 exec, vcc, vcc")
        e("s_cbranch_scc1 L_py")
        e("s_mov_b64 exec, -1")
    else:
        e("s_branch L_py_in")
        a.label("L_py")
        if ysl: e(f"s_sleep {ysl}")
        e(f"global_load_dwordx4 v[{G3}:{G3+3}], v{vK}, s[40:41] {YF}")
        e("s_sub_u32 s43, s43, 1"); e("s_cbranch_scc1 L_end")
        a.label("L_py_in")
        e("s_waitcnt vmcnt(0)")
        check([G3], T0, 84)
        e("s_cbranch_vccnz L_py")
    if "diag2" in exp:
        stamp(2); e("s_sub_u32 s70, 0x3fff, s43"); e("s_add_u32 s70, s70, s64"); e("s_addc_u32 s71, s65, 0")
    red64(G3)
    e("s_mov_b32 exec_lo, 0x00010001"); e("s_mov_b32 exec_hi, 0x00010001")
    e(f"v_fma_f32 v{G3}, v{G3}, v{vB2}, v{vX}")
    e(f"v_cvt_pk_bf16_f32 v{G3}, v{G3}, v{G3}")
    e(f"global_store_short v{vXo}, v{G3}, s[36:37]" + (" " + OUTF))
    e("s_cmp_lg_u32 s2, 0"); e("s_cbranch_scc1 L_end")
    e("s_add_u32 s11, s11, 1"); e(f"v_mov_b32 v{T0}, s11"); e("s_mov_b64 exec, 1")
    e(f"global_store_dword v4, v{T0}, s[40:41]" + ("" if "eplain" in exp else " sc1"))
    a.label("L_end")
    if stamps:
        stamp(7)
        e("s_waitcnt lgkmcnt(0)")
        e("s_mov_b32 s48, 3000")
        a.label("L_dly"); e("s_sleep 8"); e("s_sub_u32 s48, s48, 100"); e("s_cbranch_scc0 L_dly")
        e("s_mov_b64 exec, 1")
        e("s_lshl_b32 s48, s2, 3"); e("s_add_u32 s48, s48, s3"); e("s_lshl_b32 s48, s48, 6"); e(f"s_add_u32 s48, s48, {STAMP}")
        e("v_mov_b32 v1, s48")
        for i in range(16): e(f"v_mov_b32 v{8+i}, s{64+i}")
        for i in range(4): e(f"global_store_dwordx4 v1, v[{8+4*i}:{11+4*i}], s[40:41] offset:{16*i}")
    a.label("L_exit")
    a.label("L_last")
    e("s_endpgm")

    body = a.finalize()
    L = [HDR.rstrip(), f"; @launch grid=(256,1,1) block=(512,1,1) lds={LDS}",
         '.amdgcn_target "amdgcn-amd-amdhsa--gfx950"', ".text", f".globl {NAME}_kernel", ".p2align 8",
         f".type {NAME}_kernel,@function", f"{NAME}_kernel:"]
    if stamps: L += [f"s_mov_b64 s[{64+2*i}:{65+2*i}], 0" for i in range(1, 8)] + ["s_nop 0"]
    L += ["    " + x if not x.endswith(":") else x for x in body]
    L += ['.section .rodata,"a"', ".p2align 6", f".amdhsa_kernel {NAME}_kernel",
          f"  .amdhsa_next_free_vgpr {NV}", "  .amdhsa_next_free_sgpr 100", f"  .amdhsa_accum_offset {NV}",
          "  .amdhsa_group_segment_fixed_size 0", "  .amdhsa_kernarg_size 104", "  .amdhsa_user_sgpr_count 2",
          "  .amdhsa_user_sgpr_kernarg_segment_ptr 1", "  .amdhsa_system_sgpr_workgroup_id_x 1", ".end_amdhsa_kernel"]
    return "\n".join(L) + "\n"

if __name__ == "__main__":
    B = ("v0", "pk", "omask", "ymask", "perm", "cmap", "eplain", "w2mid", "wo23", "yfill", "rmap")
    D = dict(pw=16, thr0=2, n0=5, QH="sc1 nt", OF="sc1 nt", ngo=12, sched=[(5, 6), (27, 10)], YFILL="sc1")
    V = dict(a=dict(exp=B+("spec",)), b=dict(exp=B+("spec", "ofill", "ofq")), c=dict(exp=B+("spec", "ofill", "ofq"), og=3), d=dict(exp=B+("spec", "ofill", "ofq"), vsig=29), e=dict(exp=B+("spec", "prio")))
    for n, x in V.items(): open(f"k37_{n}.s", "w").write(gen(**x, **D))
```

```python
import re
import gen42 as g
B = ("v0", "pk", "omask", "ymask", "perm", "cmap", "eplain", "w2mid", "yfill", "rmap", "spec", "fcom")
D = dict(pw=16, thr0=2, n0=5, QH="sc1 nt", OF="sc1 nt", ngo=12, sched=[(5, 6), (27, 10)], YFILL="sc1", vsl=1)
s = g.gen(exp=B, **D)
DOC = """; ---------------------------------------------------------------------------------------------
; ---------------------------------------------------------------------------------------------
"""
NOTE = {
 "L_P": "P waves", "L_P0": "P0: x and wq loads", "L_S2": "S waves: K / V stream with QK^T, softmax and PV interleaved",
 "L_sb": "S: write-through copy of o only if some reader is on another XCD", "L_tile2": "P0: w1 loads, layernorm, q and h partials",
 "L_v0": "P0: wait to learn whether write-through copies are needed", "L_P123": "P1..P3", "L_pq": "P1: gather q partials",
 "L_P23": "P2 / P3: second FFN matmul", "L_ph": "gather pre-activation partials", "L_wo": "all P waves: output projection",
 "L_po": "gather o partials", "L_pf": "final stage: f, then y", "L_py": "gather y (only lanes still missing)",
}
lines = s.split("\n")
out = []
for l in lines:
    if l.startswith(".amdgcn_target"): out.append(DOC.rstrip())
    m = re.match(r"^(L_\w+):$", l)
    if m and m.group(1) in NOTE: out.append("; ---- " + NOTE[m.group(1)])
    out.append(l.rstrip())
open("cdna_kernels/" + g.NAME + ".s", "w").write("\n".join(out))
```

```python
import sys, struct
from asmlib import Asm
NAME = "recurrent_scan__sliding_block_cached__dense_activation_squared_relu__decode"
HDR = open("cdna_kernels/" + NAME + ".s.ref").read().split("; Override launch")[0]

QP, OP, YP, FP, HP, DELTA = 0x10000, 0x80000, 0x100000, 0x150000, 0x1A0000, 0x200000
YS = 1152
STAMP = 0x800000
FULL = "row_mask:0xf bank_mask:0xf"
LOG2E = 1.4426950408889634
def f32(x): return "0x%08x" % struct.unpack("<I", struct.pack("<f", x))[0]
MF = "v_mfma_f32_16x16x32_bf16"
QCNT, VCNT, YCNT, OCNT, PUBF, VERD, FCNT = 0, 4, 8, 12, 16, 20, 24
LQ, LY, LF = 64, 512, 4608
LDS = 4608 + 2048
def gen(stamps=False, thr=8, thrK=6, thr0=2, n0=4, vsig=32, nqk=24, qdelay=6, qpipe=1, rotc=(5, 3, 8), boost=0, bmask=0xaa, pw=0, thrE=0, nE=32, ngo=13, osl=0, ysl=0, QH='sc1', OF='sc1', AST='', FF_='sc1', YF='sc1', OUTF='', oinit=-1, sched=None, YFILL='sc1 nt', fyd=0, YST='sc1', FST='sc1', og=4, VF='nt', vsl=2, exp=()):
    a = Asm(); e = a.e
    inS = [False]
    def stamp(i, force=False):
        if inS[0] and "prog" in exp and not force and i in (1, 2, 3, 4, 6): return
        if stamps: e(f"s_memrealtime s[{64+2*i}:{65+2*i}]")
    def xrow(op, v, t):
        e(f"v_mov_b32 v{t}, v{v}"); e(f"v_permlane16_swap_b32 v{v}, v{t}"); e(f"{op} v{v}, v{v}, v{t}")
        e(f"v_mov_b32 v{t}, v{v}"); e(f"v_permlane32_swap_b32 v{v}, v{t}"); e(f"{op} v{v}, v{v}, v{t}")
    RED8 = ("quad_perm:[1,0,3,2]", "quad_perm:[2,3,0,1]", "row_half_mirror")
    def red8(op, regs):
        for ctl in RED8:
            for v in regs: e(f"{op}_dpp v{v}, v{v}, v{v} {ctl} {FULL}")
    def tag4(D, S, t0):
        for r in range(4): e(f"v_bfi_b32 v{D+r}, v{vFF}, s{t0+r}, v{S+r}")
    def check(grans, acc, t0=12):
        allr = []
        for G in grans:
            for r in range(4): e(f"v_xor_b32 v{G+r}, s{t0+r}, v{G+r}"); allr.append(G + r)
        e(f"v_or3_b32 v{acc}, v{allr[0]}, v{allr[1]}, v{allr[2]}")
        rest = allr[3:]
        while len(rest) >= 2:
            e(f"v_or3_b32 v{acc}, v{acc}, v{rest[0]}, v{rest[1]}"); rest = rest[2:]
        if rest: e(f"v_or_b32 v{acc}, v{acc}, v{rest[0]}")
        e(f"v_cmp_ne_u32_sdwa vcc, v{acc}, v4 src0_sel:BYTE_0 src1_sel:DWORD")
    def pollhead(lbl):
        e("s_movk_i32 s43, 0x3fff")
        a.label(lbl)
        e("s_and_b32 s48, s43, 63"); e("s_cselect_b64 s[60:61], s[62:63], s[40:41]")
    def seltags():
        e("s_cselect_b64 s[12:13], s[92:93], s[84:85]"); e("s_cselect_b64 s[14:15], s[94:95], s[86:87]")
    def ldswait(lbl, off, val, vt, sleep=1):
        e("s_mov_b32 s43, 0x40000")
        if sleep:
            e(f"s_branch {lbl}_in"); a.label(lbl); e(f"s_sleep {sleep}"); a.label(lbl + "_in")
        else: a.label(lbl)
        e(f"ds_read_b32 v{vt}, v4 offset:{off}")
        e("s_sub_u32 s43, s43, 1"); e("s_cbranch_scc1 L_end")
        e("s_waitcnt lgkmcnt(0)")
        e(f"v_cmp_gt_u32 vcc, {val}, v{vt}")
        e(f"s_cbranch_vccnz {lbl}")
    def ldsinc(off):
        e("s_mov_b64 exec, 1"); e(f"ds_add_u32 v4, v5 offset:{off}"); e("s_mov_b64 exec, -1")
    def common2():
        if "wo23" in exp: e("s_mov_b32 s59, 0")
        e("s_and_b32 s8, s5, 1"); e("s_lshr_b32 s9, s5, 1"); e("s_lshl1_add_u32 s10, s4, s8")
        e(f"v_and_b32 v{T0}, 1, v0"); e(f"v_lshlrev_b32 v{T0}, 4, v{T0}")
        e(f"v_mov_b32 v{T1}, 0xffff"); e(f"v_lshlrev_b32 v{T0}, v{T0}, v{T1}")
        e(f"v_bfe_u32 v{T1}, v0, 1, 2")
        for r in range(4): e(f"v_cmp_eq_u32 s[{80+2*r}:{81+2*r}], {r}, v{T1}")
        e(f"v_mov_b32 v{vFF}, 0xff")
        e(f"s_add_u32 s62, s40, {DELTA}"); e("s_addc_u32 s63, s41, 0")
        for r in range(4): e(f"v_cndmask_b32 v{MM+r}, 0, v{T0}, s[{80+2*r}:{81+2*r}]")
    def perm():
        if "perm" in exp:
            e(f"v_bfe_u32 v{vH}, v0, 1, 4"); e(f"v_and_b32 v{T1}, 1, v0"); e(f"v_lshl_add_u32 v{vH}, v{T1}, 4, v{vH}"); e(f"v_and_or_b32 v{vH}, v0, 32, v{vH}"); e(f"v_lshlrev_b32 v{vH}, 4, v{vH}")
    def woloads():
        e(f"v_lshlrev_b32 v{vOc}, 12, v3"); e(f"v_lshl_add_u32 v{vOc}, v2, 4, v{vOc}")
        e("s_lshl_b32 s52, s10, 16"); e("s_lshl_b32 s53, s3, 14"); e("s_add_u32 s52, s52, s53"); e("s_lshl_b32 s53, s9, 8"); e("s_add_u32 s52, s52, s53"); e("s_sub_u32 s52, s52, 0x10000")
        e(f"v_add_u32 v{vOc}, s52, v{vOc}")
        for u in range(4): e(f"global_load_dwordx4 v[{40+4*u}:{43+4*u}], v{vOc}, s[24:25] offset:{1024*u} nt")
    def tags():
        e("s_getreg_b32 s96, hwreg(HW_REG_XCC_ID, 0, 4)")
        e("s_waitcnt lgkmcnt(0)")
        e("s_mul_i32 s97, s11, 0x9E3779B1"); e("s_add_u32 s97, s97, 0x7F4A7C15")
        e("s_lshl_b32 s97, s97, 6"); e("s_or_b32 s97, s97, 32"); e("s_or_b32 s96, s96, s97"); e("s_or_b32 s97, s97, 16")
        for t0, w in ((92, 96), (84, 97)):
            e(f"s_and_b32 s{t0}, s{w}, 0xff"); e(f"s_bfe_u32 s{t0+1}, s{w}, 0x80008"); e(f"s_bfe_u32 s{t0+2}, s{w}, 0x80010"); e(f"s_lshr_b32 s{t0+3}, s{w}, 24")
    def verdict_wait(lbl, vt):
        e("s_movk_i32 s43, 200")
        a.label(lbl)
        e(f"ds_read_b32 v{vt}, v4 offset:{VERD}")
        e("s_sub_u32 s43, s43, 1"); e(f"s_cbranch_scc1 {lbl}_b")
        e("s_waitcnt lgkmcnt(0)")
        e(f"v_readfirstlane_b32 s48, v{vt}")
        e("s_cmp_eq_u32 s48, 1"); e("s_cbranch_scc1 L_end")
        e("s_sleep 4")
        e("s_cmp_eq_u32 s48, 0"); e(f"s_cbranch_scc1 {lbl}")
        a.label(lbl + "_b")

    K0, V0, BQ, DD, SS, MM, OO = 8, 72, 136, 152, 168, 172, 176
    W0, A0, XS, XR, XF, PD = 8, 72, 136, 144, 152, 176
    T0, T1, T2, T3, vGr, vFF, vB, vI, vOff, vOff2 = 180, 181, 182, 183, 184, 185, 186, 187, 188, 189
    vK, vV, vXo, vWo, vPf, vB2, vX, vOc, vR, vH = 190, 191, 192, 193, 194, 195, 196, 197, 198, 199
    G2, G3 = 200, 204
    W1, QM, HM = 208, 240, 244
    NV = 256

    NVF = 1 if "v0" in exp else 0
    SEQ = [("V", 15)] * NVF + [("K", t) for t in range(16)] + [("V", t) for t in range(16 - NVF)]
    def sload(n):
        kind, t = SEQ[n]
        if kind == "K": e(f"buffer_load_dwordx4 v[{K0+4*t}:{K0+4*t+3}], v{vK}, s[44:47], s99 offen nt")
        else: e(f"buffer_load_dwordx4 v[{V0+4*t}:{V0+4*t+3}], v{vV}, s[52:55], s99 offen nt")
    stamp(0)
    e("s_load_dwordx16 s[16:31], s[0:1], 0")
    e("s_load_dwordx8 s[32:39], s[0:1], 64")
    e("s_load_dwordx2 s[40:41], s[0:1], 96")
    e("v_lshrrev_b32 v1, 6, v0"); e("v_and_b32 v0, 63, v0")
    e("s_cmp_ge_u32 s2, 256"); e("v_readfirstlane_b32 s3, v1"); e("s_cbranch_scc1 L_exit")
    e("s_and_b32 s49, s2, 7"); e("s_lshr_b32 s50, s2, 6")
    e("s_lshl2_add_u32 s4, s49, s50")
    e("s_bfe_u32 s5, s2, 0x30003")
    e("s_lshr_b32 s6, s5, 2")
    e("v_lshrrev_b32 v3, 4, v0"); e(f"v_lshlrev_b32 v{vV}, 4, v0"); e("v_mov_b32 v4, 0")
    e("s_mov_b32 s47, 0x20000")
    e("s_cmp_ge_u32 s3, 4"); e("s_cbranch_scc1 L_P")
    e("s_and_b32 s7, s5, 3"); e("s_lshl2_add_u32 s98, s7, s3")
    e("v_lshlrev_b32 v6, 2, v0")
    e("s_lshl_b32 s48, s6, 5"); e("s_add_u32 s48, s48, s4"); e("s_lshl_b32 s48, s48, 6"); e("s_add_u32 s48, s48, s98")
    e(f"v_bfe_u32 v{vK}, v0, 2, 2"); e(f"v_lshlrev_b32 v{vK}, 8, v{vK}")
    e("s_lshl_b32 s48, s48, 14"); e("s_add_u32 s48, s48, 0xC0000")
    e("ds_write_b32 v6, v4")
    e(f"v_lshl_add_u32 v{vK}, v3, 6, v{vK}"); e(f"v_and_b32 v{vGr}, 3, v0"); e(f"v_lshl_add_u32 v{vK}, v{vGr}, 4, v{vK}")
    assert rotc == (5, 3, 8)
    e("s_lshl2_add_u32 s99, s98, s98"); e("s_lshl1_add_u32 s52, s4, s4"); e("s_add_u32 s99, s99, s52"); e("s_lshl3_add_u32 s99, s6, s99")
    e("s_lshl_b32 s99, s99, 10"); e("s_and_b32 s99, s99, 0x3fff")
    e("s_movk_i32 s46, 0x4000"); e("s_movk_i32 s54, 0x4000"); e("s_mov_b32 s55, 0x20000")
    e("s_waitcnt lgkmcnt(0)")
    e("s_add_u32 s52, s20, s48"); e("s_addc_u32 s53, s21, 0")
    for n in range(thr0):
        sload(n)
        if n == 0: e("s_add_u32 s44, s18, s48"); e("s_addc_u32 s45, s19, 0")
        e("s_addk_i32 s99, 0x400"); e("s_and_b32 s99, s99, 0x3fff")
    e("s_load_dword s11, s[40:41], 0")
    e("s_barrier")
    e("s_branch L_S2")
    a.label("L_P")
    e("v_and_b32 v2, 15, v0"); e(f"v_bfe_u32 v{vB}, v0, 3, 1"); e(f"v_and_b32 v{vI}, 7, v0"); e("v_mov_b32 v5, 1")
    e("s_cmp_eq_u32 s3, 4"); e("s_cbranch_scc1 L_P0")
    e("s_getpc_b64 s[58:59]")
    a.label("L_pc")
    e(f"v_mul_u32_u24 v{T0}, 0xc00, v1"); e(f"v_lshl_add_u32 v{T0}, v0, 7, v{T0}"); e(f"v_add_u32 v{T0}, {-5*0xc00 & 0xffffffff}, v{T0}")
    e(f"v_min_u32 v{T0}, L_last-L_pc, v{T0}")
    e("s_mov_b32 exec_lo, 0xffffff"); e("s_mov_b32 exec_hi, 0")
    e(f"global_load_dword v{vPf}, v{T0}, s[58:59]")
    e("s_mov_b64 exec, -1")
    e("s_waitcnt lgkmcnt(0)")
    e("s_load_dword s11, s[40:41], 0")
    e("s_barrier")
    e("s_branch L_P123")
    a.label("L_P0")
    e("s_lshl_b32 s56, s5, 19"); e("s_lshl_b32 s54, s4, 8"); e("s_add_u32 s56, s56, s54")
    e("s_lshl_b32 s57, s50, 15")
    e("s_lshl_b32 s53, s5, 7"); e("s_mov_b32 s46, 0x400000"); e("s_lshl_b32 s52, s50, 3")
    e(f"v_lshl_add_u32 v{T0}, v3, 3, v{vI}"); e(f"v_lshlrev_b32 v{T0}, 5, v{T0}"); e(f"v_lshl_add_u32 v{T0}, v{vB}, 10, v{T0}")
    e(f"v_lshlrev_b32 v{T1}, 5, v3"); e(f"v_lshl_add_u32 v{T1}, v{vB}, 10, v{T1}"); e(f"v_add_u32 v{T1}, s53, v{T1}")
    e(f"v_lshlrev_b32 v{T3}, 4, v2"); e(f"v_lshl_add_u32 v{T2}, v3, 17, v{T3}"); e(f"v_add_u32 v{T2}, s56, v{T2}")
    for m in range(4):
        e(f"v_add_u32 v{G2+m}, s52, v{T1}")
        if m < 3: e("s_add_u32 s52, s52, 8"); e("s_and_b32 s52, s52, 31")
    e("s_waitcnt lgkmcnt(0)")
    e("s_mov_b64 s[44:45], s[22:23]")
    e(f"global_load_dwordx4 v[{XS}:{XS+3}], v{T0}, s[16:17]"); e(f"global_load_dwordx4 v[{XS+4}:{XS+7}], v{T0}, s[16:17] offset:16")
    for m in range(4): e(f"global_load_dwordx2 v[{XR+2*m}:{XR+2*m+1}], v{G2+m}, s[16:17]")
    e("s_load_dword s11, s[40:41], 0")
    e("s_barrier")
    if "wqlin" in exp: e("s_lshl_b32 s57, s2, 14")
    if "wqK" in exp:
        e("s_sub_u32 s57, s48, 0x80000"); e("s_mov_b64 s[44:45], s[18:19]"); e("s_mov_b32 s46, 0x4000000")
    if "wq1k" in exp: e("s_lshr_b32 s57, s2, 3"); e("s_lshl_b32 s57, s57, 17"); e("s_lshl_b32 s52, s49, 10"); e("s_add_u32 s57, s57, s52")
    for u in range(16):
        if "wqlin" in exp or "wqK" in exp:
            e(f"buffer_load_dwordx4 v[{W0+4*u}:{W0+4*u+3}], v{vV}, s[44:47], s57 offen nt"); e("s_add_u32 s57, s57, 0x400"); continue
        if "wq1k" in exp:
            e(f"buffer_load_dwordx4 v[{W0+4*u}:{W0+4*u+3}], v{vV}, s[44:47], s57 offen nt"); e("s_add_u32 s57, s57, 0x2000"); continue
        if pw and u >= pw: e(f"s_waitcnt vmcnt({pw-1})")
        e(f"buffer_load_dwordx4 v[{W0+4*u}:{W0+4*u+3}], v{T2}, s[44:47], s57 offen nt")
        if u < 15: e("s_add_u32 s57, s57, 0x2000")
        if u % 4 == 3 and u < 15: e("s_and_b32 s57, s57, 0x1ffff")
    e("s_branch L_tile2")

    inS[0] = True
    vM, vL = DD, DD + 1
    def andt(t):
        for r in range(4): e(f"v_and_b32_dpp v{K0+4*t+r}, v{SS+t//4}, v{MM+r} row_newbcast:{4*(t%4)} {FULL}")
    def part_qk(issued):
        tags()
        stamp(1)
        if "noP" not in exp and "noqw" not in exp: ldswait("L_sq", QCNT, 4, T0)
        stamp(2)
        for t in range(4):
            e(f"s_mov_b32 exec_lo, 0x{0x000F000F << (4*t):08x}"); e("s_mov_b32 exec_hi, exec_lo")
            e(f"ds_read_b128 v[{BQ+4*t}:{BQ+4*t+3}], v{T3} offset:{LQ}")
        e("s_mov_b64 exec, -1")
        for t in range(4):
            e(f"s_waitcnt vmcnt({issued-16-NVF}) lgkmcnt({3-t})")
            for c in range(4):
                k = K0 + 4 * (4 * c + t); d = DD + 4 * c
                e(f"{MF} v[{d}:{d+3}], v[{k}:{k+3}], v[{BQ+4*t}:{BQ+4*t+3}], " + ("0" if t == 0 else f"v[{d}:{d+3}]"))
    def part_sm():
        for c in range(4): e(f"v_mov_b32_dpp v{SS+c}, v{DD+4*c} quad_perm:[0,0,0,0] {FULL}")
        for r in range(1, 4):
            for c in range(4): e(f"v_add_f32_dpp v{SS+c}, v{DD+4*c+r}, v{SS+c} quad_perm:[{r},{r},{r},{r}] {FULL}")
        e(f"v_max3_f32 v{vM}, v{SS}, v{SS+1}, v{SS+2}"); e(f"v_max_f32 v{vM}, v{vM}, v{SS+3}")
        e(f"s_mov_b32 s48, {f32(LOG2E * 128 ** -0.5)}")
        e(f"v_mov_b32 v{DD+3}, s96")
        e(f"v_max_f32_dpp v{vM}, v{vM}, v{vM} row_ror:4 {FULL}")
        e(f"v_max_f32_dpp v{vM}, v{vM}, v{vM} row_ror:8 {FULL}")
        xrow("v_max_f32", vM, T0)
        e(f"v_mul_f32 v{vM}, s48, v{vM}")
        for c in range(4): e(f"v_fma_f32 v{SS+c}, v{SS+c}, s48, -v{vM}")
        for c in range(4): e(f"v_exp_f32 v{SS+c}, v{SS+c}")
        e(f"v_add_f32 v{vL}, v{SS}, v{SS+1}"); e(f"v_add_f32 v{T0}, v{SS+2}, v{SS+3}"); e(f"v_add_f32 v{vL}, v{vL}, v{T0}")
        e(f"v_add_f32_dpp v{vL}, v{vL}, v{vL} row_ror:4 {FULL}"); e(f"v_add_f32_dpp v{vL}, v{vL}, v{vL} row_ror:8 {FULL}")
        xrow("v_add_f32", vL, T0)
        e(f"v_rcp_f32 v{vR}, v{vL}"); e(f"v_log_f32 v{T0}, v{vL}")
        for c in range(4): e(f"v_mul_f32 v{SS+c}, v{SS+c}, v{vR}")
        e(f"v_add_f32 v{DD+2}, v{vM}, v{T0}")
        for c in range(4): e(f"v_cvt_pk_bf16_f32 v{SS+c}, v{SS+c}, v{SS+c}")
        stamp(3)
    lsum = []
    def part_and(lo, hi):
        for t in range(lo, hi):
            if lsum: e(lsum.pop(0))
            andt(t)
    parts = [part_qk, lambda n: part_sm(), lambda n: part_and(0, 8), lambda n: part_and(8, 16)]
    for n in range(thr0, 32):
        t = n % 16
        if n == thr0:
            a.label("L_S2")
            e("v_and_b32 v2, 15, v0"); e("v_mov_b32 v5, 1")
            if "st1" in exp: stamp(6)
            e(f"v_lshl_add_u32 v{T0}, v3, 2, v{vGr}"); e(f"v_lshlrev_b32 v{T3}, 4, v{T0}")
            for r in range(16): e(f"v_mov_b32 v{BQ+r}, 0")
            common2()
            e("s_lshl_b32 s57, s6, 4"); e("s_add_u32 s57, s57, s98"); e("s_lshl_b32 s57, s57, 6"); e("s_lshl_b32 s51, s4, 14"); e("s_add_u32 s57, s57, s51")
            e(f"s_add_u32 s57, s57, {OP}")
            e(f"v_lshrrev_b32 v{vOff}, 1, v2"); e(f"v_lshlrev_b32 v{vOff}, 11, v{vOff}")
            e(f"v_and_b32 v{T0}, 1, v2"); e(f"v_lshl_add_u32 v{vOff}, v{T0}, 5, v{vOff}")
            e(f"v_and_b32 v{T0}, 1, v3"); e(f"v_lshl_add_u32 v{vOff}, v{T0}, 4, v{vOff}"); e(f"v_add_u32 v{vOff}, s57, v{vOff}")
            if boost:
                e("s_getreg_b32 s57, hwreg(HW_REG_XCC_ID, 0, 4)"); e(f"s_lshr_b32 s57, {bmask}, s57"); e("s_and_b32 s56, s57, 1")
        th = thr0 if n < n0 else (thrK if n < 16 else thr)
        if n >= nE: th = thrE
        if sched:
            for n_, t_ in sched:
                if n >= n_: th = t_
        if th <= n:
            if boost and n >= n0:
                e("s_cmp_lg_u32 s56, 0"); e(f"s_cbranch_scc1 L_b{n}")
                e(f"s_waitcnt vmcnt({th-1})")
                a.label(f"L_b{n}")
                e(f"s_waitcnt vmcnt({th-1+boost})")
            else: e(f"s_waitcnt vmcnt({th-1})")
        sload(n)
        if n < 31: e("s_addk_i32 s99, 0x400"); e("s_and_b32 s99, s99, 0x3fff")
        if "prog" in exp and n in (7, 13, 19, 25, 31): stamp({7: 1, 13: 2, 19: 3, 25: 4, 31: 6}[n], True)
        if n + 1 == vsig: ldsinc(VCNT)
        if n == ngo: ldsinc(PUBF)
        if n == oinit:
            e("s_mov_b32 exec_hi, 0"); e(f"global_store_dwordx4 v{vOff}, v[{BQ}:{BQ+3}], s[62:63]"); e("s_mov_b32 exec_hi, -1")
        if n >= nqk and parts: parts.pop(0)(n + 1)
    while parts: parts.pop(0)(32)
    stamp(4)
    for i_, t in enumerate([15] * NVF + list(range(16 - NVF))):
        e(f"s_waitcnt vmcnt({15-i_})")
        e(f"{MF} v[{OO}:{OO+3}], v[{K0+4*t}:{K0+4*t+3}], v[{V0+4*t}:{V0+4*t+3}], " + ("0" if i_ == 0 else f"v[{OO}:{OO+3}]"))
    e("s_mov_b32 exec_hi, 0")
    e(f"v_cvt_pk_bf16_f32 v{DD}, v{OO}, v{OO+1}"); e(f"v_cvt_pk_bf16_f32 v{DD+1}, v{OO+2}, v{OO+3}")
    e(f"global_store_dwordx4 v{vOff}, v[{DD}:{DD+3}], s[62:63] {AST}")
    ldsinc(OCNT)
    stamp(5)
    if "diag" in exp: e("s_waitcnt vmcnt(0)"); stamp(6, True)
    if "wb" in exp:
        e("s_lshr_b32 s48, s2, 3"); e("s_or_b32 s48, s48, s3"); e("s_cbranch_scc1 L_nwb"); e("buffer_wbl2 sc1"); a.label("L_nwb")
    if "noP" in exp or "P0only" in exp or "cut" in exp: e("s_branch L_end")
    verdict_wait("L_sb", T0)
    e("s_mov_b32 exec_hi, 0")
    e(f"v_mov_b32 v{DD+3}, s97")
    e(f"global_store_dwordx4 v{vOff}, v[{DD}:{DD+3}], s[40:41] sc1")
    e("s_branch L_end")

    inS[0] = False
    a.label("L_tile2")
    e("s_mov_b64 s[88:89], s[28:29]"); e("s_mov_b32 s90, 1409024"); e("s_mov_b32 s91, 0x20000")
    e("s_lshl_b32 s52, s5, 4"); e("s_add_u32 s52, s52, s50"); e(f"s_mul_i32 s52, s52, {4*2752}"); e("s_mul_i32 s53, s49, 352"); e("s_add_u32 s52, s52, s53")
    e(f"s_mov_b32 s53, {16*2752}"); e(f"v_mad_u32_u24 v{T2}, v3, s53, v{T3}")
    e(f"v_mov_b32 v{T3}, 0x7f000000"); e("v_cmp_gt_u32 vcc, 6, v2"); e(f"v_cndmask_b32 v{T3}, v{T3}, v{T2}, vcc")
    if "now1" in exp: e(f"v_mov_b32 v{T2}, 0x7f000000"); e(f"v_mov_b32 v{T3}, 0x7f000000")
    for k in range(4):
        if pw: e(f"s_waitcnt vmcnt({pw-1})")
        e(f"buffer_load_dwordx4 v[{W1+4*k}:{W1+4*k+3}], v{T2}, s[88:91], s52 offen nt")
        e(f"buffer_load_dwordx4 v[{W1+16+4*k}:{W1+16+4*k+3}], v{T3}, s[88:91], s52 offen offset:256 nt")
        if k < 3: e("s_addk_i32 s52, 2752")
    N1 = 8
    stamp(1)
    common2()
    e(f"v_mov_b32 v{T2}, 0x3f803f80")
    e(f"s_waitcnt vmcnt({20+N1})")
    sS, sQ = T0, T1
    for r in range(8):
        e(f"v_dot2_f32_bf16 v{sS}, v{XS+r}, v{T2}, " + ("0" if r == 0 else f"v{sS}"))
        e(f"v_dot2_f32_bf16 v{sQ}, v{XS+r}, v{XS+r}, " + ("0" if r == 0 else f"v{sQ}"))
    e(f"s_waitcnt vmcnt({16+N1})")
    unp = []
    for r in range(8):
        unp.append(f"v_lshlrev_b32 v{XF+2*r}, 16, v{XR+r}"); unp.append(f"v_and_b32 v{XF+2*r+1}, 0xffff0000, v{XR+r}")
    e(unp.pop()); e(unp.pop())
    for ctl in RED8:
        for v in (sS, sQ): e(f"v_add_f32_dpp v{v}, v{v}, v{v} {ctl} {FULL}")
        e(unp.pop())
    for sw in ("16", "32"):
        e(f"v_mov_b32 v{T2}, v{sS}"); e(f"v_mov_b32 v{T3}, v{sQ}"); e(unp.pop()); e(f"v_permlane{sw}_swap_b32 v{sS}, v{T2}"); e(f"v_permlane{sw}_swap_b32 v{sQ}, v{T3}")
        e(f"v_add_f32 v{sS}, v{sS}, v{T2}"); e(f"v_add_f32 v{sQ}, v{sQ}, v{T3}")
    e(f"v_mul_f32 v{sS}, {f32(1/512)}, v{sS}")
    e(f"v_mul_f32 v{T2}, v{sS}, v{sS}")
    e(f"s_mov_b32 s56, {f32(1/512)}")
    e(f"v_fma_f32 v{sQ}, v{sQ}, s56, -v{T2}"); e(f"v_max_f32 v{sQ}, 0, v{sQ}")
    e(f"v_cvt_pk_bf16_f32 v{T2}, v{sS}, v{sQ}")
    e(f"v_lshlrev_b32 v{sS}, 16, v{T2}"); e(f"v_and_b32 v{sQ}, 0xffff0000, v{T2}")
    e(f"v_add_f32 v{sQ}, {f32(1e-5)}, v{sQ}"); e(f"v_cvt_pk_bf16_f32 v{sQ}, v{sQ}, v{sQ}"); e(f"v_lshlrev_b32 v{sQ}, 16, v{sQ}")
    e(f"v_sqrt_f32 v{sQ}, v{sQ}"); e(unp.pop()); e(f"v_cvt_pk_bf16_f32 v{sQ}, v{sQ}, v{sQ}"); e(f"v_lshlrev_b32 v{sQ}, 16, v{sQ}")
    e(f"v_rcp_f32 v{sQ}, v{sQ}")
    for x in unp: e(x)
    e(f"v_mul_f32 v{sS}, v{sS}, v{sQ}")
    for u in range(16): e(f"v_fma_f32 v{XF+u}, v{XF+u}, v{sQ}, -v{sS}")
    for u in range(16): e(f"v_cvt_pk_bf16_f32 v{XF+u}, v{XF+u}, v{XF+u}")
    e("s_lshl_b32 s55, s4, 3"); e("s_add_u32 s55, s55, s5"); e("s_lshl_b32 s55, s55, 10"); e(f"s_add_u32 s55, s55, {QP}"); e(f"v_add_u32 v{vOff2}, s55, v{vV}")
    e("s_lshl_b32 s55, s5, 2"); e("s_add_u32 s55, s55, s50"); e("s_lshl_b32 s55, s55, 7"); e(f"s_mul_i32 s54, s49, {11*4096}"); e("s_add_u32 s55, s55, s54"); e(f"s_add_u32 s55, s55, {HP}")
    e(f"v_lshrrev_b32 v{vH}, 1, v2"); e(f"v_lshlrev_b32 v{vH}, 12, v{vH}"); e(f"v_lshrrev_b32 v{T0}, 1, v3"); e(f"v_lshl_add_u32 v{vH}, v{T0}, 6, v{vH}")
    e(f"v_and_b32 v{T0}, 1, v2"); e(f"v_lshl_add_u32 v{vH}, v{T0}, 5, v{vH}"); e(f"v_and_b32 v{T0}, 1, v3"); e(f"v_lshl_add_u32 v{vH}, v{T0}, 4, v{vH}")
    e(f"v_add_u32 v{vH}, s55, v{vH}"); e(f"v_add_u32 v{vR}, 0x8000, v{vH}")
    for u in range(17):
        if u < 16:
            for r in range(4): e(f"v_and_b32 v{A0+4*u+r}, v{XF+u}, v{MM+r}")
        if u >= 1:
            w = u - 1
            e(f"s_waitcnt vmcnt({15-w+N1})")
            e(f"{MF} v[{QM}:{QM+3}], v[{A0+4*w}:{A0+4*w+3}], v[{W0+4*w}:{W0+4*w+3}], " + ("0" if w == 0 else f"v[{QM}:{QM+3}]"))
    tags()
    tag4(QM, QM, 92)
    if "nost" in exp: e("s_branch L_end")
    e(f"global_store_dwordx4 v{vOff2}, v[{QM}:{QM+3}], s[62:63] {AST}")
    stamp(2)
    e("s_waitcnt vmcnt(1)")
    for k in range(4):
        for hf in range(2):
            d = HM + 4 * hf; w = W1 + 16 * hf + 4 * k
            e(f"{MF} v[{d}:{d+3}], v[{A0+4*k}:{A0+4*k+3}], v[{w}:{w+3}], " + ("0" if k == 0 else f"v[{d}:{d+3}]"))
    tag4(HM, HM, 92); tag4(HM + 4, HM + 4, 92)
    e(f"global_store_dwordx4 v{vH}, v[{HM}:{HM+3}], s[62:63] {AST}")
    e("s_mov_b32 exec_lo, 0x003f003f"); e("s_mov_b32 exec_hi, 0x003f003f")
    e(f"global_store_dwordx4 v{vR}, v[{HM+4}:{HM+7}], s[62:63] {AST}")
    ldsinc(QCNT)
    ldsinc(PUBF)
    if "woearly" in exp: woloads()
    stamp(3)
    if "P0only" in exp: e("s_branch L_end")
    if "cut" in exp: e("s_branch L_wo")
    e("s_mov_b32 s43, 0x40000")
    a.label("L_v0")
    e("s_sleep 2")
    e(f"ds_read_b32 v{T0}, v4 offset:{VERD}")
    e("s_sub_u32 s43, s43, 1"); e("s_cbranch_scc1 L_end")
    e("s_waitcnt lgkmcnt(0)")
    e(f"v_readfirstlane_b32 s48, v{T0}")
    e("s_cmp_eq_u32 s48, 0"); e("s_cbranch_scc1 L_v0")
    e("s_cmp_eq_u32 s48, 1"); e("s_cbranch_scc1 L_wo")
    tag4(QM, QM, 84); tag4(HM, HM, 84); tag4(HM + 4, HM + 4, 84)
    e(f"global_store_dwordx4 v{vOff2}, v[{QM}:{QM+3}], s[40:41] sc1")
    e(f"global_store_dwordx4 v{vH}, v[{HM}:{HM+3}], s[40:41] sc1")
    e("s_mov_b32 exec_lo, 0x003f003f"); e("s_mov_b32 exec_hi, 0x003f003f")
    e(f"global_store_dwordx4 v{vR}, v[{HM+4}:{HM+7}], s[40:41] sc1")
    e("s_mov_b64 exec, -1")
    e("s_branch L_wo")

    a.label("L_P123")
    if "P0only" in exp: e("s_branch L_end")
    common2()
    if "woearly" in exp: woloads()
    if "vfill" in exp:
        e("s_cmp_lg_u32 s3, 5"); e("s_cbranch_scc1 L_vf")
        if "vq" in exp:
            e("s_lshl3_add_u32 s52, s4, s5"); e("s_lshl_b32 s52, s52, 10"); e(f"s_add_u32 s52, s52, {QP}")
            e(f"v_lshlrev_b32 v{T0}, 6, v0"); e(f"v_add_u32 v{T0}, s52, v{T0}"); e("s_mov_b64 exec, 0xffff")
            e(f"global_load_dword v{G2}, v{T0}, s[62:63] {VF}"); e("s_mov_b64 exec, -1")
            e("s_lshl2_add_u32 s52, s5, s50"); e("s_lshl_b32 s52, s52, 7"); e(f"s_mul_i32 s53, s49, {11*4096}"); e("s_add_u32 s52, s52, s53"); e(f"s_add_u32 s52, s52, {HP}")
            e(f"v_lshrrev_b32 v{T0}, 1, v0"); e(f"v_lshlrev_b32 v{T0}, 12, v{T0}"); e(f"v_and_b32 v{T1}, 1, v0"); e(f"v_lshl_add_u32 v{T0}, v{T1}, 6, v{T0}"); e(f"v_add_u32 v{T0}, s52, v{T0}")
            e("s_mov_b64 exec, 0x3fffff"); e(f"global_load_dword v{G2+1}, v{T0}, s[62:63] {VF}"); e("s_mov_b64 exec, -1")
        if "vo" in exp:
            e("s_lshl_b32 s52, s5, 8"); e("s_lshl_b32 s53, s4, 14"); e("s_add_u32 s52, s52, s53"); e(f"s_add_u32 s52, s52, {OP}")
            e(f"v_lshrrev_b32 v{T0}, 2, v0"); e(f"v_lshlrev_b32 v{T0}, 11, v{T0}"); e(f"v_and_b32 v{T1}, 3, v0"); e(f"v_lshl_add_u32 v{T0}, v{T1}, 6, v{T0}"); e(f"v_add_u32 v{T0}, s52, v{T0}")
            e("s_mov_b32 exec_hi, 0"); e(f"global_load_dword v{G2+2}, v{T0}, s[62:63] {VF}"); e("s_mov_b64 exec, -1")
        a.label("L_vf")
    if "sfill" in exp:
        e("s_cmp_eq_u32 s3, 5"); e("s_cbranch_scc1 L_sf1")
        e("s_cmp_eq_u32 s3, 6"); e("s_cbranch_scc1 L_sf2")
        if "sfo" in exp:
            e("s_lshl_b32 s52, s5, 8"); e("s_lshl_b32 s53, s4, 14"); e("s_add_u32 s52, s52, s53"); e("s_add_u32 s52, s62, s52"); e("s_addc_u32 s53, s63, 0")
            for k in range(16): e(f"s_load_dword s54, s[52:53], {OP + 2048*(k>>1) + 128*(k&1)}")
        e("s_branch L_sf3")
        a.label("L_sf1")
        if "sfq" in exp:
            e("s_lshl3_add_u32 s52, s4, s5"); e("s_lshl_b32 s52, s52, 10"); e("s_add_u32 s52, s62, s52"); e("s_addc_u32 s53, s63, 0")
            for k in range(8): e(f"s_load_dword s54, s[52:53], {QP + 128*k}")
        e("s_branch L_sf3")
        a.label("L_sf2")
        if "sfq" in exp:
            e("s_lshl2_add_u32 s52, s5, s50"); e("s_lshl_b32 s52, s52, 7"); e(f"s_mul_i32 s53, s49, {11*4096}"); e("s_add_u32 s52, s52, s53"); e(f"s_add_u32 s52, s52, {HP}"); e("s_add_u32 s52, s62, s52"); e("s_addc_u32 s53, s63, 0")
            for k in range(11): e(f"s_load_dword s54, s[52:53], {4096*k}")
        a.label("L_sf3")
    tags()
    e("s_cmp_lg_u32 s3, 5"); e("s_cbranch_scc1 L_P23")
    if "sty" in exp:
        e("s_lshl_b32 s52, s9, 6"); e("s_add_u32 s52, s52, s10"); e(f"s_mul_i32 s52, s52, {YS}"); e(f"s_add_u32 s52, s52, {YP}")
        e("s_add_u32 s52, s40, s52"); e("s_addc_u32 s53, s41, 0")
        for k in range(8): e(f"s_load_dword s54, s[52:53], {128*k}")
        if "stf" in exp:
            for k in range(8): e(f"s_load_dword s54, s[52:53], {FP-YP+128*k}")
        e("s_waitcnt lgkmcnt(0)")
    if "noP1" in exp: e("s_branch L_wo")
    e("s_lshl_b32 s52, s4, 13"); e("s_lshl_b32 s53, s6, 9"); e("s_add_u32 s52, s52, s53"); e(f"s_add_u32 s52, s52, {QP}")
    e(f"v_lshrrev_b32 v{vOff}, 2, v2"); e(f"v_lshlrev_b32 v{vOff}, 11, v{vOff}")
    e(f"v_and_b32 v{T0}, 3, v0")
    e(f"v_lshl_add_u32 v{T3}, v3, 2, v{T0}"); e(f"v_lshlrev_b32 v{T3}, 4, v{T3}")
    e(f"v_add3_u32 v{vOff}, v{vOff}, v{T3}, s52")
    ldswait("L_qp", PUBF, 5, T0, sleep=2)
    stamp(1)
    qloads = lambda R, B: [f"global_load_dwordx4 v[{R+4*i}:{R+4*i+3}], v{vOff}, {B} offset:{o} {QH}" for i, o in enumerate((0, 256, 1024, 1280))]
    for k in range(1, qpipe):
        e(f"s_sleep {qdelay}")
        for l in qloads(W0 + 16 * k, "s[62:63] {AST}"): e(l)
    for k in range(1, qpipe):
        e(f"s_waitcnt vmcnt({4*(qpipe-1-k)})")
        R = W0 + 16 * k
        check([R, R + 4, R + 8, R + 12], T0, 92)
        e(f"s_cbranch_vccnz L_q{k}")
        for r in range(8): e(f"v_add_f32 v{W0+r}, v{R+r}, v{R+8+r}")
        e("s_branch L_qok")
        a.label(f"L_q{k}")
    pollhead("L_pq")
    for l in qloads(W0, "s[60:61]"): e(l)
    seltags()
    e("s_cbranch_scc1 L_pqA")
    e(f"v_mov_b32 v{T0}, 2"); e(f"ds_write_b32 v4, v{T0} offset:{VERD}")
    a.label("L_pqA")
    e("s_sub_u32 s43, s43, 1"); e("s_cbranch_scc1 L_end")
    e("s_waitcnt vmcnt(0)")
    check([W0, W0 + 4, W0 + 8, W0 + 12], T0)
    e("s_cbranch_vccnz L_pq")
    for r in range(8): e(f"v_add_f32 v{W0+r}, v{W0+r}, v{W0+8+r}")
    a.label("L_qok")
    for n in (4, 8):
        for r in range(8): e(f"v_add_f32_dpp v{W0+r}, v{W0+r}, v{W0+r} row_ror:{n} {FULL}")
    for r in range(4): e(f"v_cvt_pk_bf16_f32 v{W0+8+r}, v{W0+2*r}, v{W0+2*r+1}")
    e(f"ds_write_b128 v{T3}, v[{W0+8}:{W0+11}] offset:{LQ}")
    ldsinc(QCNT)
    stamp(3)
    e("s_branch L_wo")

    a.label("L_P23")
    if "pt" in exp:
        e("s_cmp_lg_u32 s3, 6"); e("s_cbranch_scc1 L_npt")
        e("s_mov_b64 exec, 1")
        e("s_lshl_b32 s52, s10, 16"); e(f"v_mov_b32 v{T0}, s52")
        e(f"global_load_dword v{G2}, v{T0}, s[24:25] nt")
        for i_, b_ in enumerate(("s[32:33]", "s[36:37]", "s[40:41]", "s[62:63] {AST}")): e(f"global_load_dword v{G2+1+i_}, v4, {b_}")
        e("s_mov_b64 exec, -1")
        a.label("L_npt")
    ldsinc(QCNT)
    e("s_and_b32 s52, s10, 7"); e("s_mul_i32 s51, s49, 11"); e("s_lshr_b32 s58, s52, 1"); e("s_add_u32 s58, s58, s51"); e("s_add_u32 s58, s58, 8"); e("s_add_u32 s51, s51, s52")
    e("s_cmp_lt_u32 s52, 6"); e("s_cselect_b32 s58, s58, 86")
    e("s_bitcmp1_b32 s52, 0"); e("s_cselect_b32 s56, 0, -1"); e("s_cselect_b32 s57, -1, 0")
    e("s_cmp_eq_u32 s3, 7"); e("s_cselect_b32 s51, s51, s58"); e("s_cselect_b64 s[56:57], -1, s[56:57]")
    if "noP23" in exp: e("s_branch L_wo")
    e("s_cmp_ge_u32 s51, 86"); e("s_cbranch_scc1 L_wo")
    W2 = 56
    for r in range(16): e(f"v_mov_b32 v{W2+r}, 0"); e(f"v_mov_b32 v{A0+16+r}, 0")
    e(f"v_lshlrev_b32 v{vWo}, 12, v3"); e(f"v_lshl_add_u32 v{vWo}, v2, 4, v{vWo}"); e("s_lshl_b32 s53, s9, 8"); e("s_lshl_b32 s55, s51, 14"); e("s_add_u32 s53, s53, s55"); e(f"v_add_u32 v{vWo}, s53, v{vWo}")
    e("s_lshl_b32 s52, s51, 5"); e(f"v_lshlrev_b32 v{T3}, 3, v3"); e(f"v_add_u32 v{T3}, s52, v{T3}")
    e(f"global_load_dwordx2 v[{XS}:{XS+1}], v{T3}, s[30:31]")
    e("s_lshl_b32 s52, s51, 12"); e(f"s_add_u32 s52, s52, {HP}")
    e(f"v_lshlrev_b32 v{vOff}, 7, v{vI}"); e(f"v_lshl_add_u32 v{vOff}, v{vB}, 6, v{vOff}"); e(f"v_lshl_add_u32 v{vOff}, v3, 4, v{vOff}"); e(f"v_add_u32 v{vOff}, s52, v{vOff}")
    w2l = [f"global_load_dwordx4 v[{W2+4*u}:{W2+4*u+3}], v{vWo}, s[32:33] offset:{1024*u}" + ("" if "w2plain" in exp else " nt") for u in range(4)]
    if "w2early" in exp:
        e("s_mov_b64 exec, s[56:57]")
        for l in w2l: e(l)
        e("s_mov_b64 exec, -1")
    if "w2mid" in exp:
        ldswait("L_fq0", QCNT, 3, T0, sleep=2)
        e("s_mov_b64 exec, s[56:57]")
        for l in w2l: e(l)
        e("s_mov_b64 exec, -1")
    ldswait("L_fq", PUBF, 5, T0, sleep=2)
    e("s_mov_b64 exec, s[56:57]")
    if not any(x in exp for x in ("w2early", "w2mid", "w2late")):
        for l in w2l: e(l)
    stamp(1)
    H = W0
    if "nohp" in exp: e("s_waitcnt vmcnt(0)"); e("s_branch L_hok")
    pollhead("L_ph")
    for k in range(4): e(f"global_load_dwordx4 v[{H+4*k}:{H+4*k+3}], v{vOff}, s[60:61] offset:{1024*k} {QH}")
    seltags()
    e("s_cbranch_scc1 L_phA")
    e(f"v_mov_b32 v{T0}, 2"); e(f"ds_write_b32 v4, v{T0} offset:{VERD}")
    a.label("L_phA")
    e("s_sub_u32 s43, s43, 1"); e("s_cbranch_scc1 L_end")
    e("s_waitcnt vmcnt(0)")
    check([H, H + 4, H + 8, H + 12], T0)
    e("s_cbranch_vccnz L_ph")
    a.label("L_hok")
    e("s_mov_b64 exec, 1"); e(f"ds_max_u32 v4, v5 offset:{VERD}"); e("s_mov_b64 exec, s[56:57]")
    stamp(2)
    if "w2late" in exp:
        for l in w2l: e(l)
    if "wo23" in exp:
        e("s_mov_b64 exec, -1"); woloads(); e("s_mov_b32 s59, 1"); e("s_mov_b64 exec, s[56:57]")
    for r in range(8): e(f"v_add_f32 v{H+r}, v{H+r}, v{H+8+r}")
    for r in range(4): e(f"v_add_f32 v{H+r}, v{H+r}, v{H+4+r}")
    e(f"v_lshlrev_b32 v{H+4}, 16, v{XS}"); e(f"v_and_b32 v{H+5}, 0xffff0000, v{XS}")
    red8("v_add_f32", [H, H + 1, H + 2, H + 3])
    e(f"v_lshlrev_b32 v{H+6}, 16, v{XS+1}"); e(f"v_and_b32 v{H+7}, 0xffff0000, v{XS+1}")
    for u in range(4): e(f"v_add_f32 v{H+u}, v{H+u}, v{H+4+u}")
    for u in range(4): e(f"v_max_f32 v{H+u}, 0, v{H+u}")
    for u in range(4): e(f"v_mul_f32 v{H+u}, v{H+u}, v{H+u}")
    for u in range(4): e(f"v_cvt_pk_bf16_f32 v{H+u}, v{H+u}, v{H+u}")
    for u in range(4):
        for r in range(4): e(f"v_and_b32 v{A0+16+4*u+r}, v{H+u}, v{MM+r}")
    e("s_mov_b64 exec, -1")
    if "w2late" in exp: e("s_waitcnt vmcnt(4)" if "wo23" in exp else "s_waitcnt vmcnt(0)")
    for u in range(4): e(f"{MF} v[{PD}:{PD+3}], v[{A0+16+4*u}:{A0+16+4*u+3}], v[{W2+4*u}:{W2+4*u+3}], " + ("0" if u == 0 else f"v[{PD}:{PD+3}]"))
    if "perm" in exp:
        perm()
        e("s_lshl_b32 s52, s3, 10"); e("s_and_b32 s52, s52, 1024"); e(f"v_add_u32 v{T2}, s52, v{vV}")
        e(f"ds_write_b128 v{T2}, v[{PD}:{PD+3}] offset:{LF}")
        e("s_cmp_lt_u32 s58, 86"); e("s_cbranch_scc1 L_f2u")
        e(f"ds_read_b128 v[{PD}:{PD+3}], v{vH} offset:{LF+1024}")
        e("s_waitcnt lgkmcnt(0)")
        e("s_branch L_f1")
        a.label("L_f2u")
        e("s_mov_b64 exec, 1"); e(f"ds_add_rtn_u32 v{T0}, v4, v5 offset:{FCNT}")
        e("s_waitcnt lgkmcnt(0)")
        e(f"v_cmp_ne_u32 vcc, 1, v{T0}"); e("s_mov_b64 exec, -1"); e("s_cbranch_vccnz L_wo")
        e(f"ds_read_b128 v[{H}:{H+3}], v{vH} offset:{LF}"); e(f"ds_read_b128 v[{PD}:{PD+3}], v{vH} offset:{LF+1024}")
        e("s_waitcnt lgkmcnt(0)")
        for r in range(4): e(f"v_add_f32 v{PD+r}, v{PD+r}, v{H+r}")
    else:
        e("s_cmp_ge_u32 s58, 86"); e("s_cbranch_scc1 L_f1")
        e("s_lshl_b32 s52, s3, 10"); e("s_and_b32 s52, s52, 1024"); e(f"v_add_u32 v{T2}, s52, v{vV}"); e(f"v_xor_b32 v{T3}, 1024, v{T2}")
        e(f"ds_write_b128 v{T2}, v[{PD}:{PD+3}] offset:{LF}")
        e("s_mov_b64 exec, 1"); e(f"ds_add_rtn_u32 v{T0}, v4, v5 offset:{FCNT}")
        e("s_waitcnt lgkmcnt(0)")
        e(f"v_cmp_ne_u32 vcc, 1, v{T0}"); e("s_mov_b64 exec, -1"); e("s_cbranch_vccnz L_wo")
        e(f"ds_read_b128 v[{H}:{H+3}], v{T3} offset:{LF}")
        e("s_waitcnt lgkmcnt(0)")
        for r in range(4): e(f"v_add_f32 v{PD+r}, v{PD+r}, v{H+r}")
    a.label("L_f1")
    tag4(QM, PD, 84); e("s_mov_b32 s57, 1"); e("s_branch L_wo2")

    a.label("L_wo")
    e("s_mov_b32 s57, 0")
    a.label("L_wo2")
    if "nowo" in exp: e("s_branch L_end")
    e(f"v_lshlrev_b32 v{vWo}, 12, v3"); e(f"v_lshl_add_u32 v{vWo}, v2, 4, v{vWo}"); e("s_lshl_b32 s53, s9, 8"); e(f"v_add_u32 v{vWo}, s53, v{vWo}")
    e("s_sub_u32 s51, s3, 4")
    e("s_lshl_b32 s52, s10, 16"); e("s_lshl_b32 s53, s51, 14"); e("s_add_u32 s52, s52, s53")
    e("s_add_u32 s24, s24, s52"); e("s_addc_u32 s25, s25, 0")
    e("s_lshl_b32 s52, s8, 2"); e("s_add_u32 s52, s52, s51"); e("s_lshl_b32 s52, s52, 11"); e("s_lshl_b32 s53, s4, 14"); e("s_add_u32 s52, s52, s53"); e(f"s_add_u32 s52, s52, {OP}")
    e(f"v_lshl_add_u32 v{vOff}, v{vB}, 4, v{vI}"); e(f"v_lshlrev_b32 v{vOff}, 6, v{vOff}"); e(f"v_lshl_add_u32 v{vOff}, v3, 4, v{vOff}"); e(f"v_add_u32 v{vOff}, s52, v{vOff}")
    e("s_lshl_b32 s52, s51, 10"); e(f"v_add_u32 v{T2}, s52, v{vV}")
    e("s_lshl_b32 s52, s9, 6"); e("s_add_u32 s52, s52, s10"); e(f"s_mul_i32 s52, s52, {YS}"); e(f"s_add_u32 s52, s52, {YP}")
    e(f"v_add_u32 v{vGr}, s52, v{vV}"); e(f"v_add_u32 v{vOff2}, {FP-YP}, v{vGr}")
    e(f"v_and_b32 v{vOc}, 1, v3"); e(f"v_lshrrev_b32 v{T0}, 1, v3"); e(f"v_lshl_or_b32 v{vOc}, v{vOc}, 1, v{T0}")
    if "cmap" in exp:
        perm()
        e("s_lshr_b32 s54, s49, 1"); e("s_and_b32 s55, s49, 1"); e("s_lshl2_add_u32 s56, s5, s50" if "rmap" in exp else "s_lshr_b32 s56, s2, 3")
        e("s_lshl_b32 s52, s56, 2"); e("s_lshl_b32 s53, s54, 7"); e("s_add_u32 s52, s52, s53")
        e(f"v_add_lshl_u32 v{vOc}, v{vOc}, s52, 1")
        e("s_lshl_b32 s52, s55, 10"); e(f"v_add_u32 v{vXo}, s52, v{vOc}")
        e(f"s_mul_i32 s52, s54, {64*YS}"); e("s_lshl_b32 s53, s55, 9"); e("s_add_u32 s52, s52, s53"); e("s_lshl4_add_u32 s52, s56, s52"); e(f"s_add_u32 s52, s52, {YP}")
    else:
        if "perm" in exp: e("s_and_b32 s52, s10, 31"); perm()
        else: e("s_and_b32 s52, s10, 15"); e("s_lshl_b32 s52, s52, 1"); e("s_bfe_u32 s53, s10, 0x10004"); e("s_add_u32 s52, s52, s53")
        e("s_lshl_b32 s52, s52, 2"); e("s_lshl_b32 s53, s9, 7"); e("s_add_u32 s52, s52, s53")
        e(f"v_add_lshl_u32 v{vOc}, v{vOc}, s52, 1")
        e("s_lshr_b32 s52, s10, 5"); e("s_lshl_b32 s52, s52, 10"); e(f"v_add_u32 v{vXo}, s52, v{vOc}")
        e(f"s_mul_i32 s52, s9, {64*YS}"); e("s_lshl_b32 s53, s10, 4"); e("s_add_u32 s52, s52, s53"); e(f"s_add_u32 s52, s52, {YP}")
    e(f"v_mul_u32_u24 v{vK}, {YS}, v0"); e(f"v_add_u32 v{vK}, s52, v{vK}"); e(f"v_add_u32 v{T3}, {FP-YP}, v{vK}")
    if "nosmall" not in exp:
        e(f"global_load_ushort v{vB2}, v{vOc}, s[34:35]")
        e(f"global_load_ushort v{vX}, v{vXo}, s[16:17]")
    ldswait("L_pv", VCNT, 4, T0, sleep=vsl)
    WO = 40
    if "woearly" not in exp:
        if "wo23" in exp: e("s_cmp_lg_u32 s59, 0"); e("s_cbranch_scc1 L_wod")
        for u in range(4): e(f"global_load_dwordx4 v[{WO+4*u}:{WO+4*u+3}], v{vWo}, s[24:25] offset:{1024*u} nt")
        a.label("L_wod")
    if "fcom" in exp:
        e("s_cmp_eq_u32 s57, 0"); e("s_cbranch_scc1 L_nfs")
        e(f"global_store_dwordx4 v{vOff2}, v[{QM}:{QM+3}], s[40:41] sc1")
        stamp(3)
        a.label("L_nfs")
    if "ofill" in exp:
        if "ofq" in exp:
            e("s_lshl_b32 s52, s9, 1"); e("s_lshl_b32 exec_lo, 0x0101, s52"); e("s_mov_b32 exec_hi, 0")
        e(f"global_load_dword v{XF}, v{vOff}, s[62:63] sc1 nt"); e(f"global_load_dword v{XF+4}, v{vOff}, s[62:63] offset:512 sc1 nt")
        e("s_mov_b64 exec, -1")
    if "cut" in exp: e("s_waitcnt vmcnt(0)"); e("s_branch L_end")
    if "yfill" in exp:
        e("s_cmp_lg_u32 s3, 5"); e("s_cbranch_scc1 L_nyf")
        e("s_and_b32 s52, s56, 7"); e("s_lshl_b32 s52, s52, 3"); e("s_lshl_b64 exec, 0xff, s52")
        e(f"global_load_dword v{G3}, v{vK}, s[40:41] {YFILL}")
        e("s_mov_b64 exec, -1")
        a.label("L_nyf")
    if "diag" in exp: stamp(1); e("s_waitcnt vmcnt(0)"); stamp(2)
    if "prio" in exp: e("s_setprio 2")
    if "noog" not in exp: ldswait("L_pw", OCNT, og, T0, sleep=0)
    stamp(4)
    O1, O2, S1, S2 = XS, XS + 4, XF, XF + 4
    if osl:
        e("s_movk_i32 s43, 0x3fff"); e("s_branch L_po"); a.label("L_po_s"); e(f"s_sleep {osl}"); a.label("L_po")
        e("s_and_b32 s48, s43, 63"); e("s_cselect_b64 s[60:61], s[62:63], s[40:41]")
    else: pollhead("L_po")
    e(f"global_load_dwordx4 v[{S1}:{S1+3}], v{vOff}, s[60:61] {OF}"); e(f"global_load_dwordx4 v[{S2}:{S2+3}], v{vOff}, s[60:61] offset:512 {OF}")
    e("s_cselect_b32 s42, s96, s97")
    e("s_sub_u32 s43, s43, 1"); e("s_cbranch_scc1 L_end")
    e("s_waitcnt vmcnt(0)")
    if "omask" in exp:
        e(f"v_cmp_ne_u32 vcc, s42, v{S1+3}"); e(f"v_cmp_ne_u32 s[58:59], s42, v{S2+3}")
        e(f"v_max_f32 v{T0}, v{S1+2}, v{S2+2}")
        e("s_or_b64 exec, vcc, s[58:59]")
        e("s_cbranch_scc1 " + ("L_po_s" if osl else "L_po"))
        e("s_mov_b64 exec, -1")
        e(f"v_max_f32_dpp v{T0}, v{T0}, v{T0} {RED8[0]} {FULL}")
        e(f"v_lshlrev_b32 v{O1+2}, 16, v{S1+1}"); e(f"v_and_b32 v{O1+3}, 0xffff0000, v{S1+1}")
    else:
        e(f"v_max_f32 v{T0}, v{S1+2}, v{S2+2}")
        e(f"v_cmp_ne_u32 vcc, s42, v{S1+3}"); e(f"v_cmp_ne_u32 s[58:59], s42, v{S2+3}")
        e(f"v_max_f32_dpp v{T0}, v{T0}, v{T0} {RED8[0]} {FULL}")
        e("s_or_b64 vcc, vcc, s[58:59]")
        e("s_cbranch_scc1 " + ("L_po_s" if osl else "L_po"))
    stamp(5)
    e(f"v_max_f32_dpp v{T0}, v{T0}, v{T0} {RED8[1]} {FULL}")
    e(f"v_lshlrev_b32 v{O1}, 16, v{S1}"); e(f"v_and_b32 v{O1+1}, 0xffff0000, v{S1}")
    e(f"v_max_f32_dpp v{T0}, v{T0}, v{T0} {RED8[2]} {FULL}")
    e(f"v_sub_f32 v{S1+3}, v{S1+2}, v{T0}"); e(f"v_sub_f32 v{S2+3}, v{S2+2}, v{T0}")
    e(f"v_exp_f32 v{S1+3}, v{S1+3}"); e(f"v_exp_f32 v{S2+3}, v{S2+3}")
    if "omask" not in exp: e(f"v_lshlrev_b32 v{O1+2}, 16, v{S1+1}"); e(f"v_and_b32 v{O1+3}, 0xffff0000, v{S1+1}")
    e(f"v_add_f32 v{T0}, v{S1+3}, v{S2+3}")
    e(f"v_lshlrev_b32 v{O2}, 16, v{S2}"); e(f"v_and_b32 v{O2+1}, 0xffff0000, v{S2}")
    e(f"v_add_f32_dpp v{T0}, v{T0}, v{T0} {RED8[0]} {FULL}")
    e(f"v_lshlrev_b32 v{O2+2}, 16, v{S2+1}"); e(f"v_and_b32 v{O2+3}, 0xffff0000, v{S2+1}")
    e(f"v_add_f32_dpp v{T0}, v{T0}, v{T0} {RED8[1]} {FULL}")
    if "pk" in exp:
        e(f"v_pk_mul_f32 v[{O1}:{O1+1}], v[{O1}:{O1+1}], v[{S1+2}:{S1+3}] op_sel:[0,1] op_sel_hi:[1,1]")
        e(f"v_pk_mul_f32 v[{O1+2}:{O1+3}], v[{O1+2}:{O1+3}], v[{S1+2}:{S1+3}] op_sel:[0,1] op_sel_hi:[1,1]")
        e(f"v_add_f32_dpp v{T0}, v{T0}, v{T0} {RED8[2]} {FULL}")
        e(f"v_pk_fma_f32 v[{O1}:{O1+1}], v[{O2}:{O2+1}], v[{S2+2}:{S2+3}], v[{O1}:{O1+1}] op_sel:[0,1,0] op_sel_hi:[1,1,1]")
        e(f"v_rcp_f32 v{T0}, v{T0}")
        e(f"v_pk_fma_f32 v[{O1+2}:{O1+3}], v[{O2+2}:{O2+3}], v[{S2+2}:{S2+3}], v[{O1+2}:{O1+3}] op_sel:[0,1,0] op_sel_hi:[1,1,1]")
        e(f"v_pk_mul_f32 v[{O1}:{O1+1}], v[{O1}:{O1+1}], v[{T0}:{T0+1}] op_sel:[0,0] op_sel_hi:[1,0]")
        e(f"v_pk_mul_f32 v[{O1+2}:{O1+3}], v[{O1+2}:{O1+3}], v[{T0}:{T0+1}] op_sel:[0,0] op_sel_hi:[1,0]")
    else:
        for u in range(2): e(f"v_mul_f32 v{O1+u}, v{O1+u}, v{S1+3}")
        e(f"v_add_f32_dpp v{T0}, v{T0}, v{T0} {RED8[2]} {FULL}")
        for u in range(2, 4): e(f"v_mul_f32 v{O1+u}, v{O1+u}, v{S1+3}")
        e(f"v_rcp_f32 v{T0}, v{T0}")
        for u in range(4): e(f"v_fmac_f32 v{O1+u}, v{O2+u}, v{S2+3}")
        for u in range(4): e(f"v_mul_f32 v{O1+u}, v{O1+u}, v{T0}")
    red8("v_add_f32", [O1, O1 + 1, O1 + 2, O1 + 3])
    for u in range(4): e(f"v_cvt_pk_bf16_f32 v{O1+u}, v{O1+u}, v{O1+u}")
    for u in range(5):
        if u < 4:
            for r in range(4): e(f"v_and_b32 v{A0+4*u+r}, v{O1+u}, v{MM+r}")
        if u >= 1:
            w = u - 1
            e(f"{MF} v[{PD}:{PD+3}], v[{A0+4*w}:{A0+4*w+3}], v[{WO+4*w}:{WO+4*w+3}], " + ("0" if w == 0 else f"v[{PD}:{PD+3}]"))
    e(f"ds_write_b128 v{T2}, v[{PD}:{PD+3}] offset:{LY}")
    e("s_mov_b64 exec, 1"); e(f"ds_add_rtn_u32 v{T0}, v4, v5 offset:{YCNT}")
    if "spec" in exp:
        e("s_mov_b64 exec, -1")
        for w in range(4): e(f"ds_read_b128 v[{W0+4*w}:{W0+4*w+3}], v{vH} offset:{LY+1024*w}")
        e("s_waitcnt lgkmcnt(4)")
        e(f"v_readfirstlane_b32 s48, v{T0}"); e("s_cmp_lg_u32 s48, 3"); e("s_cbranch_scc1 L_end")
    else:
        e("s_waitcnt lgkmcnt(0)")
        e(f"v_cmp_ne_u32 vcc, 3, v{T0}"); e("s_mov_b64 exec, -1"); e("s_cbranch_vccnz L_end")
        for w in range(4): e(f"ds_read_b128 v[{W0+4*w}:{W0+4*w+3}], v{vH if 'perm' in exp else vV} offset:{LY+1024*w}")
    if "pk" in exp:
        e("s_waitcnt lgkmcnt(2)")
        for r in (0, 2): e(f"v_pk_add_f32 v[{W0+r}:{W0+r+1}], v[{W0+r}:{W0+r+1}], v[{W0+4+r}:{W0+5+r}]")
        e("s_waitcnt lgkmcnt(0)")
        for r in (0, 2): e(f"v_pk_add_f32 v[{W0+8+r}:{W0+9+r}], v[{W0+8+r}:{W0+9+r}], v[{W0+12+r}:{W0+13+r}]")
        for r in (0, 2): e(f"v_pk_add_f32 v[{W0+r}:{W0+r+1}], v[{W0+r}:{W0+r+1}], v[{W0+8+r}:{W0+9+r}]")
    else:
        e("s_waitcnt lgkmcnt(2)")
        for r in range(4): e(f"v_add_f32 v{W0+r}, v{W0+r}, v{W0+4+r}")
        e("s_waitcnt lgkmcnt(0)")
        for r in range(4): e(f"v_add_f32 v{W0+8+r}, v{W0+8+r}, v{W0+12+r}")
        for r in range(4): e(f"v_add_f32 v{W0+r}, v{W0+r}, v{W0+8+r}")
    tag4(W0, W0, 84)
    e(f"global_store_dwordx4 v{vGr}, v[{W0}:{W0+3}], s[40:41] {YST}")
    stamp(6)
    def red64(G):
        e(f"v_permlane32_swap_b32 v{G}, v{G+1}"); e(f"v_permlane32_swap_b32 v{G+2}, v{G+3}")
        e(f"v_add_f32 v{G}, v{G}, v{G+1}"); e(f"v_add_f32 v{G+2}, v{G+2}, v{G+3}")
        e(f"v_permlane16_swap_b32 v{G}, v{G+2}"); e(f"v_add_f32 v{G}, v{G}, v{G+2}")
        for n in (8, 4, 2, 1): e(f"v_add_f32_dpp v{G}, v{G}, v{G} row_ror:{n} {FULL}")
    e("s_movk_i32 s43, 0x3fff")
    a.label("L_pf")
    e(f"global_load_dwordx4 v[{G2}:{G2+3}], v{T3}, s[40:41] {FF_}")
    if "fy" in exp:
        if fyd: e(f"s_sleep {fyd}")
        e(f"global_load_dwordx4 v[{G3}:{G3+3}], v{vK}, s[40:41] {YF}")
    e("s_sub_u32 s43, s43, 1"); e("s_cbranch_scc1 L_end")
    e("s_waitcnt vmcnt(1)" if "fy" in exp else "s_waitcnt vmcnt(0)")
    check([G2], T0, 84)
    e("s_cbranch_vccnz L_pf")
    if "fy" not in exp: e(f"global_load_dwordx4 v[{G3}:{G3+3}], v{vK}, s[40:41] {YF}")
    if "diag2" in exp: stamp(1)
    red64(G2)
    e(f"v_lshlrev_b32 v{vB2}, 16, v{vB2}"); e(f"v_lshlrev_b32 v{vX}, 16, v{vX}")
    e(f"v_add_f32 v{vB2}, v{G2}, v{vB2}")
    e(f"v_mul_f32 v{T0}, {f32(-LOG2E)}, v{vB2}"); e(f"v_exp_f32 v{T0}, v{T0}"); e(f"v_add_f32 v{T0}, 1.0, v{T0}")
    e(f"v_rcp_f32 v{T0}, v{T0}"); e("s_movk_i32 s43, 0x3fff"); e(f"v_mul_f32 v{vB2}, v{vB2}, v{T0}")
    if "ymask" in exp:
        GC = W0 + 16
        e("s_branch L_py_in")
        a.label("L_py")
        if ysl: e(f"s_sleep {ysl}")
        e(f"global_load_dwordx4 v[{G3}:{G3+3}], v{vK}, s[40:41] {YF}")
        e("s_sub_u32 s43, s43, 1"); e("s_cbranch_scc1 L_end")
        a.label("L_py_in")
        e("s_waitcnt vmcnt(0)")
        check([G3], T0, 84)
        e("s_and_b64 exec, vcc, vcc")
        e("s_cbranch_scc1 L_py")
        e("s_mov_b64 exec, -1")
    else:
        e("s_branch L_py_in")
        a.label("L_py")
        if ysl: e(f"s_sleep {ysl}")
        e(f"global_load_dwordx4 v[{G3}:{G3+3}], v{vK}, s[40:41] {YF}")
        e("s_sub_u32 s43, s43, 1"); e("s_cbranch_scc1 L_end")
        a.label("L_py_in")
        e("s_waitcnt vmcnt(0)")
        check([G3], T0, 84)
        e("s_cbranch_vccnz L_py")
    if "diag2" in exp:
        stamp(2); e("s_sub_u32 s70, 0x3fff, s43"); e("s_add_u32 s70, s70, s64"); e("s_addc_u32 s71, s65, 0")
    red64(G3)
    e("s_mov_b32 exec_lo, 0x00010001"); e("s_mov_b32 exec_hi, 0x00010001")
    e(f"v_fma_f32 v{G3}, v{G3}, v{vB2}, v{vX}")
    e(f"v_cvt_pk_bf16_f32 v{G3}, v{G3}, v{G3}")
    e(f"global_store_short v{vXo}, v{G3}, s[36:37]" + (" " + OUTF))
    e("s_cmp_lg_u32 s2, 0"); e("s_cbranch_scc1 L_end")
    e("s_add_u32 s11, s11, 1"); e(f"v_mov_b32 v{T0}, s11"); e("s_mov_b64 exec, 1")
    e(f"global_store_dword v4, v{T0}, s[40:41]" + ("" if "eplain" in exp else " sc1"))
    a.label("L_end")
    if stamps:
        stamp(7)
        e("s_waitcnt lgkmcnt(0)")
        e("s_mov_b32 s48, 3000")
        a.label("L_dly"); e("s_sleep 8"); e("s_sub_u32 s48, s48, 100"); e("s_cbranch_scc0 L_dly")
        e("s_mov_b64 exec, 1")
        e("s_lshl_b32 s48, s2, 3"); e("s_add_u32 s48, s48, s3"); e("s_lshl_b32 s48, s48, 6"); e(f"s_add_u32 s48, s48, {STAMP}")
        e("v_mov_b32 v1, s48")
        for i in range(16): e(f"v_mov_b32 v{8+i}, s{64+i}")
        for i in range(4): e(f"global_store_dwordx4 v1, v[{8+4*i}:{11+4*i}], s[40:41] offset:{16*i}")
    a.label("L_exit")
    a.label("L_last")
    e("s_endpgm")

    body = a.finalize()
    L = [HDR.rstrip(), f"; @launch grid=(256,1,1) block=(512,1,1) lds={LDS}",
         '.amdgcn_target "amdgcn-amd-amdhsa--gfx950"', ".text", f".globl {NAME}_kernel", ".p2align 8",
         f".type {NAME}_kernel,@function", f"{NAME}_kernel:"]
    if stamps: L += [f"s_mov_b64 s[{64+2*i}:{65+2*i}], 0" for i in range(1, 8)] + ["s_nop 0"]
    L += ["    " + x if not x.endswith(":") else x for x in body]
    L += ['.section .rodata,"a"', ".p2align 6", f".amdhsa_kernel {NAME}_kernel",
          f"  .amdhsa_next_free_vgpr {NV}", "  .amdhsa_next_free_sgpr 100", f"  .amdhsa_accum_offset {NV}",
          "  .amdhsa_group_segment_fixed_size 0", "  .amdhsa_kernarg_size 104", "  .amdhsa_user_sgpr_count 2",
          "  .amdhsa_user_sgpr_kernarg_segment_ptr 1", "  .amdhsa_system_sgpr_workgroup_id_x 1", ".end_amdhsa_kernel"]
    return "\n".join(L) + "\n"

if __name__ == "__main__":
    B = ("v0", "pk", "omask", "ymask", "perm", "cmap", "eplain", "yfill", "rmap", "spec", "fcom")
    D = dict(pw=16, thr0=2, n0=5, QH="sc1 nt", YFILL="sc1", OF="sc1 nt", vsl=1)
    S1 = [(5, 6), (27, 10)]; S0 = [(5, 6)]
    V = dict(a=dict(exp=B+("w2mid",), sched=S1, ngo=12), b=dict(exp=B+("w2mid",), sched=S0, ngo=12), c=dict(exp=B+("w2mid",), sched=[(5, 6), (29, 8)], ngo=12), d=dict(exp=B+("w2early",), sched=S1, ngo=12),
             e=dict(exp=B+("w2mid",), sched=S1, ngo=10), f=dict(exp=B+("w2mid",), sched=[(5, 6), (25, 12)], ngo=11, nqk=22), g=dict(exp=B+("w2mid",), sched=[(5, 5), (27, 10)], ngo=12))
    for n, x in V.items(): open(f"k42_{n}.s", "w").write(gen(**x, **D))
    x = dict(V["a"]); x["exp"] += ("diag",); open("k42_diag.s", "w").write(gen(stamps=True, **x, **D))
```

```python
import sys, struct
from asmlib import Asm
NAME = "recurrent_scan__sliding_block_cached__dense_activation_squared_relu__decode"
HDR = open("cdna_kernels/" + NAME + ".s.ref").read().split("; Override launch")[0]

QP, OP, YP, FP, HP, DELTA = 0x10000, 0x80000, 0x100000, 0x150000, 0x1A0000, 0x200000
YS = 1152
STAMP = 0x800000
FULL = "row_mask:0xf bank_mask:0xf"
LOG2E = 1.4426950408889634
def f32(x): return "0x%08x" % struct.unpack("<I", struct.pack("<f", x))[0]
MF = "v_mfma_f32_16x16x32_bf16"
QCNT, VCNT, YCNT, OCNT, PUBF, VERD, FCNT = 0, 4, 8, 12, 16, 20, 24
LQ, LY, LF = 64, 512, 4608
LDS = 4608 + 2048
def gen(stamps=False, thr=8, thrK=6, thr0=2, n0=4, vsig=32, nqk=24, qdelay=6, qpipe=1, rotc=(5, 3, 8), boost=0, bmask=0xaa, pw=0, thrE=0, nE=32, ngo=13, osl=0, ysl=0, QH='sc1', OF='sc1', AST='', FF_='sc1', YF='sc1', OUTF='', oinit=-1, sched=None, YFILL='sc1 nt', fyd=0, YST='sc1', FST='sc1', og=4, VF='nt', vsl=2, fixx=-1, exp=()):
    a = Asm(); e = a.e
    inS = [False]
    def stamp(i, force=False):
        if inS[0] and "prog" in exp and not force and i in (1, 2, 3, 4, 6): return
        if stamps: e(f"s_memrealtime s[{64+2*i}:{65+2*i}]")
    def xrow(op, v, t):
        e(f"v_mov_b32 v{t}, v{v}"); e(f"v_permlane16_swap_b32 v{v}, v{t}"); e(f"{op} v{v}, v{v}, v{t}")
        e(f"v_mov_b32 v{t}, v{v}"); e(f"v_permlane32_swap_b32 v{v}, v{t}"); e(f"{op} v{v}, v{v}, v{t}")
    RED8 = ("quad_perm:[1,0,3,2]", "quad_perm:[2,3,0,1]", "row_half_mirror")
    def red8(op, regs):
        for ctl in RED8:
            for v in regs: e(f"{op}_dpp v{v}, v{v}, v{v} {ctl} {FULL}")
    def tag4(D, S, t0):
        for r in range(4): e(f"v_bfi_b32 v{D+r}, v{vFF}, s{t0+r}, v{S+r}")
    def check(grans, acc, t0=12):
        allr = []
        for G in grans:
            for r in range(4): e(f"v_xor_b32 v{G+r}, s{t0+r}, v{G+r}"); allr.append(G + r)
        e(f"v_or3_b32 v{acc}, v{allr[0]}, v{allr[1]}, v{allr[2]}")
        rest = allr[3:]
        while len(rest) >= 2:
            e(f"v_or3_b32 v{acc}, v{acc}, v{rest[0]}, v{rest[1]}"); rest = rest[2:]
        if rest: e(f"v_or_b32 v{acc}, v{acc}, v{rest[0]}")
        e(f"v_cmp_ne_u32_sdwa vcc, v{acc}, v4 src0_sel:BYTE_0 src1_sel:DWORD")
    def pollhead(lbl):
        e("s_movk_i32 s43, 0x3fff")
        a.label(lbl)
        e("s_and_b32 s48, s43, 63"); e("s_cselect_b64 s[60:61], s[62:63], s[40:41]")
    def seltags():
        e("s_cselect_b64 s[12:13], s[92:93], s[84:85]"); e("s_cselect_b64 s[14:15], s[94:95], s[86:87]")
    def ldswait(lbl, off, val, vt, sleep=1):
        e("s_mov_b32 s43, 0x40000")
        if sleep:
            e(f"s_branch {lbl}_in"); a.label(lbl); e(f"s_sleep {sleep}"); a.label(lbl + "_in")
        else: a.label(lbl)
        e(f"ds_read_b32 v{vt}, v4 offset:{off}")
        e("s_sub_u32 s43, s43, 1"); e("s_cbranch_scc1 L_end")
        e("s_waitcnt lgkmcnt(0)")
        e(f"v_cmp_gt_u32 vcc, {val}, v{vt}")
        e(f"s_cbranch_vccnz {lbl}")
    def ldsinc(off):
        e("s_mov_b64 exec, 1"); e(f"ds_add_u32 v4, v5 offset:{off}"); e("s_mov_b64 exec, -1")
    def common2():
        if "wo23" in exp: e("s_mov_b32 s59, 0")
        e("s_and_b32 s8, s5, 1"); e("s_lshr_b32 s9, s5, 1"); e("s_lshl1_add_u32 s10, s4, s8")
        e(f"v_and_b32 v{T0}, 1, v0"); e(f"v_lshlrev_b32 v{T0}, 4, v{T0}")
        e(f"v_mov_b32 v{T1}, 0xffff"); e(f"v_lshlrev_b32 v{T0}, v{T0}, v{T1}")
        e(f"v_bfe_u32 v{T1}, v0, 1, 2")
        for r in range(4): e(f"v_cmp_eq_u32 s[{80+2*r}:{81+2*r}], {r}, v{T1}")
        e(f"v_mov_b32 v{vFF}, 0xff")
        e(f"s_add_u32 s62, s40, {DELTA}"); e("s_addc_u32 s63, s41, 0")
        for r in range(4): e(f"v_cndmask_b32 v{MM+r}, 0, v{T0}, s[{80+2*r}:{81+2*r}]")
    def perm():
        if "perm" in exp:
            e(f"v_bfe_u32 v{vH}, v0, 1, 4"); e(f"v_and_b32 v{T1}, 1, v0"); e(f"v_lshl_add_u32 v{vH}, v{T1}, 4, v{vH}"); e(f"v_and_or_b32 v{vH}, v0, 32, v{vH}"); e(f"v_lshlrev_b32 v{vH}, 4, v{vH}")
    def woloads():
        e(f"v_lshlrev_b32 v{vOc}, 12, v3"); e(f"v_lshl_add_u32 v{vOc}, v2, 4, v{vOc}")
        e("s_lshl_b32 s52, s10, 16"); e("s_lshl_b32 s53, s3, 14"); e("s_add_u32 s52, s52, s53"); e("s_lshl_b32 s53, s9, 8"); e("s_add_u32 s52, s52, s53"); e("s_sub_u32 s52, s52, 0x10000")
        e(f"v_add_u32 v{vOc}, s52, v{vOc}")
        for u in range(4): e(f"global_load_dwordx4 v[{40+4*u}:{43+4*u}], v{vOc}, s[24:25] offset:{1024*u} nt")
    def tags():
        e("s_getreg_b32 s96, hwreg(HW_REG_XCC_ID, 0, 4)")
        e("s_waitcnt lgkmcnt(0)")
        e("s_mul_i32 s97, s11, 0x9E3779B1"); e("s_add_u32 s97, s97, 0x7F4A7C15")
        e("s_lshl_b32 s97, s97, 6"); e("s_or_b32 s97, s97, 32"); e("s_or_b32 s96, s96, s97"); e("s_or_b32 s97, s97, 16")
        for t0, w in ((92, 96), (84, 97)):
            e(f"s_and_b32 s{t0}, s{w}, 0xff"); e(f"s_bfe_u32 s{t0+1}, s{w}, 0x80008"); e(f"s_bfe_u32 s{t0+2}, s{w}, 0x80010"); e(f"s_lshr_b32 s{t0+3}, s{w}, 24")
    def verdict_wait(lbl, vt):
        e("s_movk_i32 s43, 200")
        a.label(lbl)
        e(f"ds_read_b32 v{vt}, v4 offset:{VERD}")
        e("s_sub_u32 s43, s43, 1"); e(f"s_cbranch_scc1 {lbl}_b")
        e("s_waitcnt lgkmcnt(0)")
        e(f"v_readfirstlane_b32 s48, v{vt}")
        e("s_cmp_eq_u32 s48, 1"); e("s_cbranch_scc1 L_end")
        e("s_sleep 4")
        e("s_cmp_eq_u32 s48, 0"); e(f"s_cbranch_scc1 {lbl}")
        a.label(lbl + "_b")

    K0, V0, BQ, DD, SS, MM, OO = 8, 72, 136, 152, 168, 172, 176
    W0, A0, XS, XR, XF, PD = 8, 72, 136, 144, 152, 176
    T0, T1, T2, T3, vGr, vFF, vB, vI, vOff, vOff2 = 180, 181, 182, 183, 184, 185, 186, 187, 188, 189
    vK, vV, vXo, vWo, vPf, vB2, vX, vOc, vR, vH = 190, 191, 192, 193, 194, 195, 196, 197, 198, 199
    G2, G3 = 200, 204
    W1, QM, HM = 208, 240, 244
    NV = 256

    NVF = 1 if "v0" in exp else 0
    SEQ = [("V", 15)] * NVF + [("K", t) for t in range(16)] + [("V", t) for t in range(16 - NVF)]
    def sload(n):
        kind, t = SEQ[n]
        if kind == "K": e(f"buffer_load_dwordx4 v[{K0+4*t}:{K0+4*t+3}], v{vK}, s[44:47], s99 offen nt")
        else: e(f"buffer_load_dwordx4 v[{V0+4*t}:{V0+4*t+3}], v{vV}, s[52:55], s99 offen nt")
    stamp(0)
    if "fix" in exp: e("s_memrealtime s[64:65]")
    e("s_load_dwordx16 s[16:31], s[0:1], 0")
    e("s_load_dwordx8 s[32:39], s[0:1], 64")
    e("s_load_dwordx2 s[40:41], s[0:1], 96")
    e("v_lshrrev_b32 v1, 6, v0"); e("v_and_b32 v0, 63, v0")
    e("s_cmp_ge_u32 s2, 256"); e("v_readfirstlane_b32 s3, v1"); e("s_cbranch_scc1 L_exit")
    e("s_and_b32 s49, s2, 7"); e("s_lshr_b32 s50, s2, 6")
    e("s_lshl2_add_u32 s4, s49, s50")
    e("s_bfe_u32 s5, s2, 0x30003")
    e("s_lshr_b32 s6, s5, 2")
    e("v_lshrrev_b32 v3, 4, v0"); e(f"v_lshlrev_b32 v{vV}, 4, v0"); e("v_mov_b32 v4, 0")
    e("s_mov_b32 s47, 0x20000")
    e("s_cmp_ge_u32 s3, 4"); e("s_cbranch_scc1 L_P")
    e("s_and_b32 s7, s5, 3"); e("s_lshl2_add_u32 s98, s7, s3")
    e("v_lshlrev_b32 v6, 2, v0")
    e("s_lshl_b32 s48, s6, 5"); e("s_add_u32 s48, s48, s4"); e("s_lshl_b32 s48, s48, 6"); e("s_add_u32 s48, s48, s98")
    e(f"v_bfe_u32 v{vK}, v0, 2, 2"); e(f"v_lshlrev_b32 v{vK}, 8, v{vK}")
    e("s_lshl_b32 s48, s48, 14"); e("s_add_u32 s48, s48, 0xC0000")
    e("ds_write_b32 v6, v4")
    e(f"v_lshl_add_u32 v{vK}, v3, 6, v{vK}"); e(f"v_and_b32 v{vGr}, 3, v0"); e(f"v_lshl_add_u32 v{vK}, v{vGr}, 4, v{vK}")
    assert rotc == (5, 3, 8)
    e("s_lshl2_add_u32 s99, s98, s98"); e("s_lshl1_add_u32 s52, s4, s4"); e("s_add_u32 s99, s99, s52"); e("s_lshl3_add_u32 s99, s6, s99")
    e("s_lshl_b32 s99, s99, 10"); e("s_and_b32 s99, s99, 0x3fff")
    e("s_movk_i32 s46, 0x4000"); e("s_movk_i32 s54, 0x4000"); e("s_mov_b32 s55, 0x20000")
    e("s_waitcnt lgkmcnt(0)")
    e("s_add_u32 s52, s20, s48"); e("s_addc_u32 s53, s21, 0")
    for n in range(thr0):
        sload(n)
        if n == 0: e("s_add_u32 s44, s18, s48"); e("s_addc_u32 s45, s19, 0")
        e("s_addk_i32 s99, 0x400"); e("s_and_b32 s99, s99, 0x3fff")
    e("s_load_dword s11, s[40:41], 0")
    e("s_barrier")
    e("s_branch L_S2")
    a.label("L_P")
    e("v_and_b32 v2, 15, v0"); e(f"v_bfe_u32 v{vB}, v0, 3, 1"); e(f"v_and_b32 v{vI}, 7, v0"); e("v_mov_b32 v5, 1")
    e("s_cmp_eq_u32 s3, 4"); e("s_cbranch_scc1 L_P0")
    e("s_getpc_b64 s[58:59]")
    a.label("L_pc")
    e(f"v_mul_u32_u24 v{T0}, 0xc00, v1"); e(f"v_lshl_add_u32 v{T0}, v0, 7, v{T0}"); e(f"v_add_u32 v{T0}, {-5*0xc00 & 0xffffffff}, v{T0}")
    e(f"v_min_u32 v{T0}, L_last-L_pc, v{T0}")
    e("s_mov_b32 exec_lo, 0xffffff"); e("s_mov_b32 exec_hi, 0")
    e(f"global_load_dword v{vPf}, v{T0}, s[58:59]")
    e("s_mov_b64 exec, -1")
    e("s_waitcnt lgkmcnt(0)")
    e("s_load_dword s11, s[40:41], 0")
    e("s_barrier")
    e("s_branch L_P123")
    a.label("L_P0")
    e("s_lshl_b32 s56, s5, 19"); e("s_lshl_b32 s54, s4, 8"); e("s_add_u32 s56, s56, s54")
    e("s_lshl_b32 s57, s50, 15")
    e("s_lshl_b32 s53, s5, 7"); e("s_mov_b32 s46, 0x400000"); e("s_lshl_b32 s52, s50, 3")
    e(f"v_lshl_add_u32 v{T0}, v3, 3, v{vI}"); e(f"v_lshlrev_b32 v{T0}, 5, v{T0}"); e(f"v_lshl_add_u32 v{T0}, v{vB}, 10, v{T0}")
    e(f"v_lshlrev_b32 v{T1}, 5, v3"); e(f"v_lshl_add_u32 v{T1}, v{vB}, 10, v{T1}"); e(f"v_add_u32 v{T1}, s53, v{T1}")
    e(f"v_lshlrev_b32 v{T3}, 4, v2"); e(f"v_lshl_add_u32 v{T2}, v3, 17, v{T3}"); e(f"v_add_u32 v{T2}, s56, v{T2}")
    for m in range(4):
        e(f"v_add_u32 v{G2+m}, s52, v{T1}")
        if m < 3: e("s_add_u32 s52, s52, 8"); e("s_and_b32 s52, s52, 31")
    e("s_waitcnt lgkmcnt(0)")
    e("s_mov_b64 s[44:45], s[22:23]")
    e(f"global_load_dwordx4 v[{XS}:{XS+3}], v{T0}, s[16:17]"); e(f"global_load_dwordx4 v[{XS+4}:{XS+7}], v{T0}, s[16:17] offset:16")
    for m in range(4): e(f"global_load_dwordx2 v[{XR+2*m}:{XR+2*m+1}], v{G2+m}, s[16:17]")
    e("s_load_dword s11, s[40:41], 0")
    e("s_barrier")
    if "wqlin" in exp: e("s_lshl_b32 s57, s2, 14")
    if "wqK" in exp:
        e("s_sub_u32 s57, s48, 0x80000"); e("s_mov_b64 s[44:45], s[18:19]"); e("s_mov_b32 s46, 0x4000000")
    if "wq1k" in exp: e("s_lshr_b32 s57, s2, 3"); e("s_lshl_b32 s57, s57, 17"); e("s_lshl_b32 s52, s49, 10"); e("s_add_u32 s57, s57, s52")
    for u in range(16):
        if "wqlin" in exp or "wqK" in exp:
            e(f"buffer_load_dwordx4 v[{W0+4*u}:{W0+4*u+3}], v{vV}, s[44:47], s57 offen nt"); e("s_add_u32 s57, s57, 0x400"); continue
        if "wq1k" in exp:
            e(f"buffer_load_dwordx4 v[{W0+4*u}:{W0+4*u+3}], v{vV}, s[44:47], s57 offen nt"); e("s_add_u32 s57, s57, 0x2000"); continue
        if pw and u >= pw: e(f"s_waitcnt vmcnt({pw-1})")
        e(f"buffer_load_dwordx4 v[{W0+4*u}:{W0+4*u+3}], v{T2}, s[44:47], s57 offen nt")
        if u < 15: e("s_add_u32 s57, s57, 0x2000")
        if u % 4 == 3 and u < 15: e("s_and_b32 s57, s57, 0x1ffff")
    e("s_branch L_tile2")

    inS[0] = True
    vM, vL = DD, DD + 1
    def andt(t):
        for r in range(4): e(f"v_and_b32_dpp v{K0+4*t+r}, v{SS+t//4}, v{MM+r} row_newbcast:{4*(t%4)} {FULL}")
    def part_qk(issued):
        tags()
        stamp(1)
        if "noP" not in exp and "noqw" not in exp: ldswait("L_sq", QCNT, 4, T0)
        stamp(2)
        for t in range(4):
            e(f"s_mov_b32 exec_lo, 0x{0x000F000F << (4*t):08x}"); e("s_mov_b32 exec_hi, exec_lo")
            e(f"ds_read_b128 v[{BQ+4*t}:{BQ+4*t+3}], v{T3} offset:{LQ}")
        e("s_mov_b64 exec, -1")
        for t in range(4):
            e(f"s_waitcnt vmcnt({issued-16-NVF}) lgkmcnt({3-t})")
            for c in range(4):
                k = K0 + 4 * (4 * c + t); d = DD + 4 * c
                e(f"{MF} v[{d}:{d+3}], v[{k}:{k+3}], v[{BQ+4*t}:{BQ+4*t+3}], " + ("0" if t == 0 else f"v[{d}:{d+3}]"))
    def part_sm():
        for c in range(4): e(f"v_mov_b32_dpp v{SS+c}, v{DD+4*c} quad_perm:[0,0,0,0] {FULL}")
        for r in range(1, 4):
            for c in range(4): e(f"v_add_f32_dpp v{SS+c}, v{DD+4*c+r}, v{SS+c} quad_perm:[{r},{r},{r},{r}] {FULL}")
        e(f"v_max3_f32 v{vM}, v{SS}, v{SS+1}, v{SS+2}"); e(f"v_max_f32 v{vM}, v{vM}, v{SS+3}")
        e(f"s_mov_b32 s48, {f32(LOG2E * 128 ** -0.5)}")
        e(f"v_mov_b32 v{DD+3}, s96")
        e(f"v_max_f32_dpp v{vM}, v{vM}, v{vM} row_ror:4 {FULL}")
        e(f"v_max_f32_dpp v{vM}, v{vM}, v{vM} row_ror:8 {FULL}")
        xrow("v_max_f32", vM, T0)
        e(f"v_mul_f32 v{vM}, s48, v{vM}")
        for c in range(4): e(f"v_fma_f32 v{SS+c}, v{SS+c}, s48, -v{vM}")
        for c in range(4): e(f"v_exp_f32 v{SS+c}, v{SS+c}")
        e(f"v_add_f32 v{vL}, v{SS}, v{SS+1}"); e(f"v_add_f32 v{T0}, v{SS+2}, v{SS+3}"); e(f"v_add_f32 v{vL}, v{vL}, v{T0}")
        e(f"v_add_f32_dpp v{vL}, v{vL}, v{vL} row_ror:4 {FULL}"); e(f"v_add_f32_dpp v{vL}, v{vL}, v{vL} row_ror:8 {FULL}")
        xrow("v_add_f32", vL, T0)
        e(f"v_rcp_f32 v{vR}, v{vL}"); e(f"v_log_f32 v{T0}, v{vL}")
        for c in range(4): e(f"v_mul_f32 v{SS+c}, v{SS+c}, v{vR}")
        e(f"v_add_f32 v{DD+2}, v{vM}, v{T0}")
        for c in range(4): e(f"v_cvt_pk_bf16_f32 v{SS+c}, v{SS+c}, v{SS+c}")
        stamp(3)
    lsum = []
    def part_and(lo, hi):
        for t in range(lo, hi):
            if lsum: e(lsum.pop(0))
            andt(t)
    parts = [part_qk, lambda n: part_sm(), lambda n: part_and(0, 8), lambda n: part_and(8, 16)]
    for n in range(thr0, 32):
        t = n % 16
        if n == thr0:
            a.label("L_S2")
            e("v_and_b32 v2, 15, v0"); e("v_mov_b32 v5, 1")
            if "st1" in exp: stamp(6)
            e(f"v_lshl_add_u32 v{T0}, v3, 2, v{vGr}"); e(f"v_lshlrev_b32 v{T3}, 4, v{T0}")
            for r in range(16): e(f"v_mov_b32 v{BQ+r}, 0")
            common2()
            e("s_lshl_b32 s57, s6, 4"); e("s_add_u32 s57, s57, s98"); e("s_lshl_b32 s57, s57, 6"); e("s_lshl_b32 s51, s4, 14"); e("s_add_u32 s57, s57, s51")
            e(f"s_add_u32 s57, s57, {OP}")
            e(f"v_lshrrev_b32 v{vOff}, 1, v2"); e(f"v_lshlrev_b32 v{vOff}, 11, v{vOff}")
            e(f"v_and_b32 v{T0}, 1, v2"); e(f"v_lshl_add_u32 v{vOff}, v{T0}, 5, v{vOff}")
            e(f"v_and_b32 v{T0}, 1, v3"); e(f"v_lshl_add_u32 v{vOff}, v{T0}, 4, v{vOff}"); e(f"v_add_u32 v{vOff}, s57, v{vOff}")
            if boost:
                e("s_getreg_b32 s57, hwreg(HW_REG_XCC_ID, 0, 4)"); e(f"s_lshr_b32 s57, {bmask}, s57"); e("s_and_b32 s56, s57, 1")
        th = thr0 if n < n0 else (thrK if n < 16 else thr)
        if n >= nE: th = thrE
        if sched:
            for n_, t_ in sched:
                if n >= n_: th = t_
        if th <= n:
            if boost and n >= n0:
                e("s_cmp_lg_u32 s56, 0"); e(f"s_cbranch_scc1 L_b{n}")
                e(f"s_waitcnt vmcnt({th-1})")
                a.label(f"L_b{n}")
                e(f"s_waitcnt vmcnt({th-1+boost})")
            else: e(f"s_waitcnt vmcnt({th-1})")
        sload(n)
        if n < 31: e("s_addk_i32 s99, 0x400"); e("s_and_b32 s99, s99, 0x3fff")
        if "prog" in exp and n in (7, 13, 19, 25, 31): stamp({7: 1, 13: 2, 19: 3, 25: 4, 31: 6}[n], True)
        if n + 1 == vsig: ldsinc(VCNT)
        if n == ngo: ldsinc(PUBF)
        if n == oinit:
            e("s_mov_b32 exec_hi, 0"); e(f"global_store_dwordx4 v{vOff}, v[{BQ}:{BQ+3}], s[62:63]"); e("s_mov_b32 exec_hi, -1")
        if n >= nqk and parts: parts.pop(0)(n + 1)
    while parts: parts.pop(0)(32)
    stamp(4)
    for i_, t in enumerate([15] * NVF + list(range(16 - NVF))):
        e(f"s_waitcnt vmcnt({15-i_})")
        e(f"{MF} v[{OO}:{OO+3}], v[{K0+4*t}:{K0+4*t+3}], v[{V0+4*t}:{V0+4*t+3}], " + ("0" if i_ == 0 else f"v[{OO}:{OO+3}]"))
    e("s_mov_b32 exec_hi, 0")
    e(f"v_cvt_pk_bf16_f32 v{DD}, v{OO}, v{OO+1}"); e(f"v_cvt_pk_bf16_f32 v{DD+1}, v{OO+2}, v{OO+3}")
    e(f"global_store_dwordx4 v{vOff}, v[{DD}:{DD+3}], s[62:63] {AST}")
    ldsinc(OCNT)
    stamp(5)
    if "diag" in exp: e("s_waitcnt vmcnt(0)"); stamp(6, True)
    if "wb" in exp:
        e("s_lshr_b32 s48, s2, 3"); e("s_or_b32 s48, s48, s3"); e("s_cbranch_scc1 L_nwb"); e("buffer_wbl2 sc1"); a.label("L_nwb")
    if "noP" in exp or "P0only" in exp or "cut" in exp: e("s_branch L_end")
    verdict_wait("L_sb", T0)
    e("s_mov_b32 exec_hi, 0")
    e(f"v_mov_b32 v{DD+3}, s97")
    e(f"global_store_dwordx4 v{vOff}, v[{DD}:{DD+3}], s[40:41] sc1")
    e("s_branch L_end")

    inS[0] = False
    a.label("L_tile2")
    e("s_mov_b64 s[88:89], s[28:29]"); e("s_mov_b32 s90, 1409024"); e("s_mov_b32 s91, 0x20000")
    e("s_lshl_b32 s52, s5, 4"); e("s_add_u32 s52, s52, s50"); e(f"s_mul_i32 s52, s52, {4*2752}"); e("s_mul_i32 s53, s49, 352"); e("s_add_u32 s52, s52, s53")
    e(f"s_mov_b32 s53, {16*2752}"); e(f"v_mad_u32_u24 v{T2}, v3, s53, v{T3}")
    e(f"v_mov_b32 v{T3}, 0x7f000000"); e("v_cmp_gt_u32 vcc, 6, v2"); e(f"v_cndmask_b32 v{T3}, v{T3}, v{T2}, vcc")
    if "now1" in exp: e(f"v_mov_b32 v{T2}, 0x7f000000"); e(f"v_mov_b32 v{T3}, 0x7f000000")
    for k in range(4):
        if pw: e(f"s_waitcnt vmcnt({pw-1})")
        e(f"buffer_load_dwordx4 v[{W1+4*k}:{W1+4*k+3}], v{T2}, s[88:91], s52 offen nt")
        e(f"buffer_load_dwordx4 v[{W1+16+4*k}:{W1+16+4*k+3}], v{T3}, s[88:91], s52 offen offset:256 nt")
        if k < 3: e("s_addk_i32 s52, 2752")
    N1 = 8
    stamp(1)
    common2()
    e(f"v_mov_b32 v{T2}, 0x3f803f80")
    e(f"s_waitcnt vmcnt({20+N1})")
    sS, sQ = T0, T1
    for r in range(8):
        e(f"v_dot2_f32_bf16 v{sS}, v{XS+r}, v{T2}, " + ("0" if r == 0 else f"v{sS}"))
        e(f"v_dot2_f32_bf16 v{sQ}, v{XS+r}, v{XS+r}, " + ("0" if r == 0 else f"v{sQ}"))
    e(f"s_waitcnt vmcnt({16+N1})")
    unp = []
    for r in range(8):
        unp.append(f"v_lshlrev_b32 v{XF+2*r}, 16, v{XR+r}"); unp.append(f"v_and_b32 v{XF+2*r+1}, 0xffff0000, v{XR+r}")
    e(unp.pop()); e(unp.pop())
    for ctl in RED8:
        for v in (sS, sQ): e(f"v_add_f32_dpp v{v}, v{v}, v{v} {ctl} {FULL}")
        e(unp.pop())
    for sw in ("16", "32"):
        e(f"v_mov_b32 v{T2}, v{sS}"); e(f"v_mov_b32 v{T3}, v{sQ}"); e(unp.pop()); e(f"v_permlane{sw}_swap_b32 v{sS}, v{T2}"); e(f"v_permlane{sw}_swap_b32 v{sQ}, v{T3}")
        e(f"v_add_f32 v{sS}, v{sS}, v{T2}"); e(f"v_add_f32 v{sQ}, v{sQ}, v{T3}")
    e(f"v_mul_f32 v{sS}, {f32(1/512)}, v{sS}")
    e(f"v_mul_f32 v{T2}, v{sS}, v{sS}")
    e(f"s_mov_b32 s56, {f32(1/512)}")
    e(f"v_fma_f32 v{sQ}, v{sQ}, s56, -v{T2}"); e(f"v_max_f32 v{sQ}, 0, v{sQ}")
    e(f"v_cvt_pk_bf16_f32 v{T2}, v{sS}, v{sQ}")
    e(f"v_lshlrev_b32 v{sS}, 16, v{T2}"); e(f"v_and_b32 v{sQ}, 0xffff0000, v{T2}")
    e(f"v_add_f32 v{sQ}, {f32(1e-5)}, v{sQ}"); e(f"v_cvt_pk_bf16_f32 v{sQ}, v{sQ}, v{sQ}"); e(f"v_lshlrev_b32 v{sQ}, 16, v{sQ}")
    e(f"v_sqrt_f32 v{sQ}, v{sQ}"); e(unp.pop()); e(f"v_cvt_pk_bf16_f32 v{sQ}, v{sQ}, v{sQ}"); e(f"v_lshlrev_b32 v{sQ}, 16, v{sQ}")
    e(f"v_rcp_f32 v{sQ}, v{sQ}")
    for x in unp: e(x)
    e(f"v_mul_f32 v{sS}, v{sS}, v{sQ}")
    for u in range(16): e(f"v_fma_f32 v{XF+u}, v{XF+u}, v{sQ}, -v{sS}")
    for u in range(16): e(f"v_cvt_pk_bf16_f32 v{XF+u}, v{XF+u}, v{XF+u}")
    e("s_lshl_b32 s55, s4, 3"); e("s_add_u32 s55, s55, s5"); e("s_lshl_b32 s55, s55, 10"); e(f"s_add_u32 s55, s55, {QP}"); e(f"v_add_u32 v{vOff2}, s55, v{vV}")
    e("s_lshl_b32 s55, s5, 2"); e("s_add_u32 s55, s55, s50"); e("s_lshl_b32 s55, s55, 7"); e(f"s_mul_i32 s54, s49, {11*4096}"); e("s_add_u32 s55, s55, s54"); e(f"s_add_u32 s55, s55, {HP}")
    e(f"v_lshrrev_b32 v{vH}, 1, v2"); e(f"v_lshlrev_b32 v{vH}, 12, v{vH}"); e(f"v_lshrrev_b32 v{T0}, 1, v3"); e(f"v_lshl_add_u32 v{vH}, v{T0}, 6, v{vH}")
    e(f"v_and_b32 v{T0}, 1, v2"); e(f"v_lshl_add_u32 v{vH}, v{T0}, 5, v{vH}"); e(f"v_and_b32 v{T0}, 1, v3"); e(f"v_lshl_add_u32 v{vH}, v{T0}, 4, v{vH}")
    e(f"v_add_u32 v{vH}, s55, v{vH}"); e(f"v_add_u32 v{vR}, 0x8000, v{vH}")
    for u in range(17):
        if u < 16:
            for r in range(4): e(f"v_and_b32 v{A0+4*u+r}, v{XF+u}, v{MM+r}")
        if u >= 1:
            w = u - 1
            e(f"s_waitcnt vmcnt({15-w+N1})")
            e(f"{MF} v[{QM}:{QM+3}], v[{A0+4*w}:{A0+4*w+3}], v[{W0+4*w}:{W0+4*w+3}], " + ("0" if w == 0 else f"v[{QM}:{QM+3}]"))
    tags()
    tag4(QM, QM, 92)
    if "nost" in exp: e("s_branch L_end")
    e(f"global_store_dwordx4 v{vOff2}, v[{QM}:{QM+3}], s[62:63] {AST}")
    stamp(2)
    e("s_waitcnt vmcnt(1)")
    for k in range(4):
        for hf in range(2):
            d = HM + 4 * hf; w = W1 + 16 * hf + 4 * k
            e(f"{MF} v[{d}:{d+3}], v[{A0+4*k}:{A0+4*k+3}], v[{w}:{w+3}], " + ("0" if k == 0 else f"v[{d}:{d+3}]"))
    tag4(HM, HM, 92); tag4(HM + 4, HM + 4, 92)
    e(f"global_store_dwordx4 v{vH}, v[{HM}:{HM+3}], s[62:63] {AST}")
    e("s_mov_b32 exec_lo, 0x003f003f"); e("s_mov_b32 exec_hi, 0x003f003f")
    e(f"global_store_dwordx4 v{vR}, v[{HM+4}:{HM+7}], s[62:63] {AST}")
    ldsinc(QCNT)
    ldsinc(PUBF)
    if "woearly" in exp: woloads()
    stamp(3)
    if "P0only" in exp: e("s_branch L_end")
    if "cut" in exp: e("s_branch L_wo")
    e("s_mov_b32 s43, 0x40000")
    a.label("L_v0")
    e("s_sleep 2")
    e(f"ds_read_b32 v{T0}, v4 offset:{VERD}")
    e("s_sub_u32 s43, s43, 1"); e("s_cbranch_scc1 L_end")
    e("s_waitcnt lgkmcnt(0)")
    e(f"v_readfirstlane_b32 s48, v{T0}")
    e("s_cmp_eq_u32 s48, 0"); e("s_cbranch_scc1 L_v0")
    e("s_cmp_eq_u32 s48, 1"); e("s_cbranch_scc1 L_wo")
    tag4(QM, QM, 84); tag4(HM, HM, 84); tag4(HM + 4, HM + 4, 84)
    e(f"global_store_dwordx4 v{vOff2}, v[{QM}:{QM+3}], s[40:41] sc1")
    e(f"global_store_dwordx4 v{vH}, v[{HM}:{HM+3}], s[40:41] sc1")
    e("s_mov_b32 exec_lo, 0x003f003f"); e("s_mov_b32 exec_hi, 0x003f003f")
    e(f"global_store_dwordx4 v{vR}, v[{HM+4}:{HM+7}], s[40:41] sc1")
    e("s_mov_b64 exec, -1")
    e("s_branch L_wo")

    a.label("L_P123")
    if "P0only" in exp: e("s_branch L_end")
    common2()
    if "woearly" in exp: woloads()
    if "vfill" in exp:
        e("s_cmp_lg_u32 s3, 5"); e("s_cbranch_scc1 L_vf")
        if "vq" in exp:
            e("s_lshl3_add_u32 s52, s4, s5"); e("s_lshl_b32 s52, s52, 10"); e(f"s_add_u32 s52, s52, {QP}")
            e(f"v_lshlrev_b32 v{T0}, 6, v0"); e(f"v_add_u32 v{T0}, s52, v{T0}"); e("s_mov_b64 exec, 0xffff")
            e(f"global_load_dword v{G2}, v{T0}, s[62:63] {VF}"); e("s_mov_b64 exec, -1")
            e("s_lshl2_add_u32 s52, s5, s50"); e("s_lshl_b32 s52, s52, 7"); e(f"s_mul_i32 s53, s49, {11*4096}"); e("s_add_u32 s52, s52, s53"); e(f"s_add_u32 s52, s52, {HP}")
            e(f"v_lshrrev_b32 v{T0}, 1, v0"); e(f"v_lshlrev_b32 v{T0}, 12, v{T0}"); e(f"v_and_b32 v{T1}, 1, v0"); e(f"v_lshl_add_u32 v{T0}, v{T1}, 6, v{T0}"); e(f"v_add_u32 v{T0}, s52, v{T0}")
            e("s_mov_b64 exec, 0x3fffff"); e(f"global_load_dword v{G2+1}, v{T0}, s[62:63] {VF}"); e("s_mov_b64 exec, -1")
        if "vo" in exp:
            e("s_lshl_b32 s52, s5, 8"); e("s_lshl_b32 s53, s4, 14"); e("s_add_u32 s52, s52, s53"); e(f"s_add_u32 s52, s52, {OP}")
            e(f"v_lshrrev_b32 v{T0}, 2, v0"); e(f"v_lshlrev_b32 v{T0}, 11, v{T0}"); e(f"v_and_b32 v{T1}, 3, v0"); e(f"v_lshl_add_u32 v{T0}, v{T1}, 6, v{T0}"); e(f"v_add_u32 v{T0}, s52, v{T0}")
            e("s_mov_b32 exec_hi, 0"); e(f"global_load_dword v{G2+2}, v{T0}, s[62:63] {VF}"); e("s_mov_b64 exec, -1")
        a.label("L_vf")
    if "sfill" in exp:
        e("s_cmp_eq_u32 s3, 5"); e("s_cbranch_scc1 L_sf1")
        e("s_cmp_eq_u32 s3, 6"); e("s_cbranch_scc1 L_sf2")
        if "sfo" in exp:
            e("s_lshl_b32 s52, s5, 8"); e("s_lshl_b32 s53, s4, 14"); e("s_add_u32 s52, s52, s53"); e("s_add_u32 s52, s62, s52"); e("s_addc_u32 s53, s63, 0")
            for k in range(16): e(f"s_load_dword s54, s[52:53], {OP + 2048*(k>>1) + 128*(k&1)}")
        e("s_branch L_sf3")
        a.label("L_sf1")
        if "sfq" in exp:
            e("s_lshl3_add_u32 s52, s4, s5"); e("s_lshl_b32 s52, s52, 10"); e("s_add_u32 s52, s62, s52"); e("s_addc_u32 s53, s63, 0")
            for k in range(8): e(f"s_load_dword s54, s[52:53], {QP + 128*k}")
        e("s_branch L_sf3")
        a.label("L_sf2")
        if "sfq" in exp:
            e("s_lshl2_add_u32 s52, s5, s50"); e("s_lshl_b32 s52, s52, 7"); e(f"s_mul_i32 s53, s49, {11*4096}"); e("s_add_u32 s52, s52, s53"); e(f"s_add_u32 s52, s52, {HP}"); e("s_add_u32 s52, s62, s52"); e("s_addc_u32 s53, s63, 0")
            for k in range(11): e(f"s_load_dword s54, s[52:53], {4096*k}")
        a.label("L_sf3")
    tags()
    e("s_cmp_lg_u32 s3, 5"); e("s_cbranch_scc1 L_P23")
    if "sty" in exp:
        e("s_lshl_b32 s52, s9, 6"); e("s_add_u32 s52, s52, s10"); e(f"s_mul_i32 s52, s52, {YS}"); e(f"s_add_u32 s52, s52, {YP}")
        e("s_add_u32 s52, s40, s52"); e("s_addc_u32 s53, s41, 0")
        for k in range(8): e(f"s_load_dword s54, s[52:53], {128*k}")
        if "stf" in exp:
            for k in range(8): e(f"s_load_dword s54, s[52:53], {FP-YP+128*k}")
        e("s_waitcnt lgkmcnt(0)")
    if "noP1" in exp: e("s_branch L_wo")
    e("s_lshl_b32 s52, s4, 13"); e("s_lshl_b32 s53, s6, 9"); e("s_add_u32 s52, s52, s53"); e(f"s_add_u32 s52, s52, {QP}")
    e(f"v_lshrrev_b32 v{vOff}, 2, v2"); e(f"v_lshlrev_b32 v{vOff}, 11, v{vOff}")
    e(f"v_and_b32 v{T0}, 3, v0")
    e(f"v_lshl_add_u32 v{T3}, v3, 2, v{T0}"); e(f"v_lshlrev_b32 v{T3}, 4, v{T3}")
    e(f"v_add3_u32 v{vOff}, v{vOff}, v{T3}, s52")
    ldswait("L_qp", PUBF, 5, T0, sleep=2)
    stamp(1)
    qloads = lambda R, B: [f"global_load_dwordx4 v[{R+4*i}:{R+4*i+3}], v{vOff}, {B} offset:{o} {QH}" for i, o in enumerate((0, 256, 1024, 1280))]
    for k in range(1, qpipe):
        e(f"s_sleep {qdelay}")
        for l in qloads(W0 + 16 * k, "s[62:63] {AST}"): e(l)
    for k in range(1, qpipe):
        e(f"s_waitcnt vmcnt({4*(qpipe-1-k)})")
        R = W0 + 16 * k
        check([R, R + 4, R + 8, R + 12], T0, 92)
        e(f"s_cbranch_vccnz L_q{k}")
        for r in range(8): e(f"v_add_f32 v{W0+r}, v{R+r}, v{R+8+r}")
        e("s_branch L_qok")
        a.label(f"L_q{k}")
    pollhead("L_pq")
    for l in qloads(W0, "s[60:61]"): e(l)
    seltags()
    e("s_cbranch_scc1 L_pqA")
    e(f"v_mov_b32 v{T0}, 2"); e(f"ds_write_b32 v4, v{T0} offset:{VERD}")
    a.label("L_pqA")
    e("s_sub_u32 s43, s43, 1"); e("s_cbranch_scc1 L_end")
    e("s_waitcnt vmcnt(0)")
    check([W0, W0 + 4, W0 + 8, W0 + 12], T0)
    e("s_cbranch_vccnz L_pq")
    for r in range(8): e(f"v_add_f32 v{W0+r}, v{W0+r}, v{W0+8+r}")
    a.label("L_qok")
    for n in (4, 8):
        for r in range(8): e(f"v_add_f32_dpp v{W0+r}, v{W0+r}, v{W0+r} row_ror:{n} {FULL}")
    for r in range(4): e(f"v_cvt_pk_bf16_f32 v{W0+8+r}, v{W0+2*r}, v{W0+2*r+1}")
    e(f"ds_write_b128 v{T3}, v[{W0+8}:{W0+11}] offset:{LQ}")
    ldsinc(QCNT)
    stamp(3)
    e("s_branch L_wo")

    a.label("L_P23")
    if "pt" in exp:
        e("s_cmp_lg_u32 s3, 6"); e("s_cbranch_scc1 L_npt")
        e("s_mov_b64 exec, 1")
        e("s_lshl_b32 s52, s10, 16"); e(f"v_mov_b32 v{T0}, s52")
        e(f"global_load_dword v{G2}, v{T0}, s[24:25] nt")
        for i_, b_ in enumerate(("s[32:33]", "s[36:37]", "s[40:41]", "s[62:63] {AST}")): e(f"global_load_dword v{G2+1+i_}, v4, {b_}")
        e("s_mov_b64 exec, -1")
        a.label("L_npt")
    ldsinc(QCNT)
    e("s_and_b32 s52, s10, 7"); e("s_mul_i32 s51, s49, 11"); e("s_lshr_b32 s58, s52, 1"); e("s_add_u32 s58, s58, s51"); e("s_add_u32 s58, s58, 8"); e("s_add_u32 s51, s51, s52")
    e("s_cmp_lt_u32 s52, 6"); e("s_cselect_b32 s58, s58, 86")
    e("s_bitcmp1_b32 s52, 0"); e("s_cselect_b32 s56, 0, -1"); e("s_cselect_b32 s57, -1, 0")
    e("s_cmp_eq_u32 s3, 7"); e("s_cselect_b32 s51, s51, s58"); e("s_cselect_b64 s[56:57], -1, s[56:57]")
    if "noP23" in exp: e("s_branch L_wo")
    e("s_cmp_ge_u32 s51, 86"); e("s_cbranch_scc1 L_wo")
    W2 = 56
    for r in range(16): e(f"v_mov_b32 v{W2+r}, 0"); e(f"v_mov_b32 v{A0+16+r}, 0")
    e(f"v_lshlrev_b32 v{vWo}, 12, v3"); e(f"v_lshl_add_u32 v{vWo}, v2, 4, v{vWo}"); e("s_lshl_b32 s53, s9, 8"); e("s_lshl_b32 s55, s51, 14"); e("s_add_u32 s53, s53, s55"); e(f"v_add_u32 v{vWo}, s53, v{vWo}")
    e("s_lshl_b32 s52, s51, 5"); e(f"v_lshlrev_b32 v{T3}, 3, v3"); e(f"v_add_u32 v{T3}, s52, v{T3}")
    e(f"global_load_dwordx2 v[{XS}:{XS+1}], v{T3}, s[30:31]")
    e("s_lshl_b32 s52, s51, 12"); e(f"s_add_u32 s52, s52, {HP}")
    e(f"v_lshlrev_b32 v{vOff}, 7, v{vI}"); e(f"v_lshl_add_u32 v{vOff}, v{vB}, 6, v{vOff}"); e(f"v_lshl_add_u32 v{vOff}, v3, 4, v{vOff}"); e(f"v_add_u32 v{vOff}, s52, v{vOff}")
    w2l = [f"global_load_dwordx4 v[{W2+4*u}:{W2+4*u+3}], v{vWo}, s[32:33] offset:{1024*u}" + ("" if "w2plain" in exp else " nt") for u in range(4)]
    if "w2early" in exp:
        e("s_mov_b64 exec, s[56:57]")
        for l in w2l: e(l)
        e("s_mov_b64 exec, -1")
    if "w2mid" in exp:
        ldswait("L_fq0", QCNT, 3, T0, sleep=2)
        e("s_mov_b64 exec, s[56:57]")
        for l in w2l: e(l)
        e("s_mov_b64 exec, -1")
    ldswait("L_fq", PUBF, 5, T0, sleep=2)
    e("s_mov_b64 exec, s[56:57]")
    if not any(x in exp for x in ("w2early", "w2mid", "w2late")):
        for l in w2l: e(l)
    stamp(1)
    H = W0
    if "nohp" in exp: e("s_waitcnt vmcnt(0)"); e("s_branch L_hok")
    pollhead("L_ph")
    for k in range(4): e(f"global_load_dwordx4 v[{H+4*k}:{H+4*k+3}], v{vOff}, s[60:61] offset:{1024*k} {QH}")
    seltags()
    e("s_cbranch_scc1 L_phA")
    e(f"v_mov_b32 v{T0}, 2"); e(f"ds_write_b32 v4, v{T0} offset:{VERD}")
    a.label("L_phA")
    e("s_sub_u32 s43, s43, 1"); e("s_cbranch_scc1 L_end")
    e("s_waitcnt vmcnt(0)")
    check([H, H + 4, H + 8, H + 12], T0)
    e("s_cbranch_vccnz L_ph")
    a.label("L_hok")
    e("s_mov_b64 exec, 1"); e(f"ds_max_u32 v4, v5 offset:{VERD}"); e("s_mov_b64 exec, s[56:57]")
    stamp(2)
    if "w2late" in exp:
        for l in w2l: e(l)
    if "wo23" in exp:
        e("s_mov_b64 exec, -1"); woloads(); e("s_mov_b32 s59, 1"); e("s_mov_b64 exec, s[56:57]")
    for r in range(8): e(f"v_add_f32 v{H+r}, v{H+r}, v{H+8+r}")
    for r in range(4): e(f"v_add_f32 v{H+r}, v{H+r}, v{H+4+r}")
    e(f"v_lshlrev_b32 v{H+4}, 16, v{XS}"); e(f"v_and_b32 v{H+5}, 0xffff0000, v{XS}")
    red8("v_add_f32", [H, H + 1, H + 2, H + 3])
    e(f"v_lshlrev_b32 v{H+6}, 16, v{XS+1}"); e(f"v_and_b32 v{H+7}, 0xffff0000, v{XS+1}")
    for u in range(4): e(f"v_add_f32 v{H+u}, v{H+u}, v{H+4+u}")
    for u in range(4): e(f"v_max_f32 v{H+u}, 0, v{H+u}")
    for u in range(4): e(f"v_mul_f32 v{H+u}, v{H+u}, v{H+u}")
    for u in range(4): e(f"v_cvt_pk_bf16_f32 v{H+u}, v{H+u}, v{H+u}")
    for u in range(4):
        for r in range(4): e(f"v_and_b32 v{A0+16+4*u+r}, v{H+u}, v{MM+r}")
    e("s_mov_b64 exec, -1")
    if "w2late" in exp: e("s_waitcnt vmcnt(4)" if "wo23" in exp else "s_waitcnt vmcnt(0)")
    for u in range(4): e(f"{MF} v[{PD}:{PD+3}], v[{A0+16+4*u}:{A0+16+4*u+3}], v[{W2+4*u}:{W2+4*u+3}], " + ("0" if u == 0 else f"v[{PD}:{PD+3}]"))
    if "perm" in exp:
        perm()
        e("s_lshl_b32 s52, s3, 10"); e("s_and_b32 s52, s52, 1024"); e(f"v_add_u32 v{T2}, s52, v{vV}")
        e(f"ds_write_b128 v{T2}, v[{PD}:{PD+3}] offset:{LF}")
        e("s_cmp_lt_u32 s58, 86"); e("s_cbranch_scc1 L_f2u")
        e(f"ds_read_b128 v[{PD}:{PD+3}], v{vH} offset:{LF+1024}")
        e("s_waitcnt lgkmcnt(0)")
        e("s_branch L_f1")
        a.label("L_f2u")
        e("s_mov_b64 exec, 1"); e(f"ds_add_rtn_u32 v{T0}, v4, v5 offset:{FCNT}")
        e("s_waitcnt lgkmcnt(0)")
        e(f"v_cmp_ne_u32 vcc, 1, v{T0}"); e("s_mov_b64 exec, -1"); e("s_cbranch_vccnz L_wo")
        e(f"ds_read_b128 v[{H}:{H+3}], v{vH} offset:{LF}"); e(f"ds_read_b128 v[{PD}:{PD+3}], v{vH} offset:{LF+1024}")
        e("s_waitcnt lgkmcnt(0)")
        for r in range(4): e(f"v_add_f32 v{PD+r}, v{PD+r}, v{H+r}")
    else:
        e("s_cmp_ge_u32 s58, 86"); e("s_cbranch_scc1 L_f1")
        e("s_lshl_b32 s52, s3, 10"); e("s_and_b32 s52, s52, 1024"); e(f"v_add_u32 v{T2}, s52, v{vV}"); e(f"v_xor_b32 v{T3}, 1024, v{T2}")
        e(f"ds_write_b128 v{T2}, v[{PD}:{PD+3}] offset:{LF}")
        e("s_mov_b64 exec, 1"); e(f"ds_add_rtn_u32 v{T0}, v4, v5 offset:{FCNT}")
        e("s_waitcnt lgkmcnt(0)")
        e(f"v_cmp_ne_u32 vcc, 1, v{T0}"); e("s_mov_b64 exec, -1"); e("s_cbranch_vccnz L_wo")
        e(f"ds_read_b128 v[{H}:{H+3}], v{T3} offset:{LF}")
        e("s_waitcnt lgkmcnt(0)")
        for r in range(4): e(f"v_add_f32 v{PD+r}, v{PD+r}, v{H+r}")
    a.label("L_f1")
    tag4(QM, PD, 84); e("s_mov_b32 s57, 1"); e("s_branch L_wo2")

    a.label("L_wo")
    e("s_mov_b32 s57, 0")
    a.label("L_wo2")
    if "nowo" in exp: e("s_branch L_end")
    e(f"v_lshlrev_b32 v{vWo}, 12, v3"); e(f"v_lshl_add_u32 v{vWo}, v2, 4, v{vWo}"); e("s_lshl_b32 s53, s9, 8"); e(f"v_add_u32 v{vWo}, s53, v{vWo}")
    e("s_sub_u32 s51, s3, 4")
    e("s_lshl_b32 s52, s10, 16"); e("s_lshl_b32 s53, s51, 14"); e("s_add_u32 s52, s52, s53")
    e("s_add_u32 s24, s24, s52"); e("s_addc_u32 s25, s25, 0")
    e("s_lshl_b32 s52, s8, 2"); e("s_add_u32 s52, s52, s51"); e("s_lshl_b32 s52, s52, 11"); e("s_lshl_b32 s53, s4, 14"); e("s_add_u32 s52, s52, s53"); e(f"s_add_u32 s52, s52, {OP}")
    e(f"v_lshl_add_u32 v{vOff}, v{vB}, 4, v{vI}"); e(f"v_lshlrev_b32 v{vOff}, 6, v{vOff}"); e(f"v_lshl_add_u32 v{vOff}, v3, 4, v{vOff}"); e(f"v_add_u32 v{vOff}, s52, v{vOff}")
    e("s_lshl_b32 s52, s51, 10"); e(f"v_add_u32 v{T2}, s52, v{vV}")
    e("s_lshl_b32 s52, s9, 6"); e("s_add_u32 s52, s52, s10"); e(f"s_mul_i32 s52, s52, {YS}"); e(f"s_add_u32 s52, s52, {YP}")
    e(f"v_add_u32 v{vGr}, s52, v{vV}"); e(f"v_add_u32 v{vOff2}, {FP-YP}, v{vGr}")
    e(f"v_and_b32 v{vOc}, 1, v3"); e(f"v_lshrrev_b32 v{T0}, 1, v3"); e(f"v_lshl_or_b32 v{vOc}, v{vOc}, 1, v{T0}")
    if "cmap" in exp:
        perm()
        e("s_lshr_b32 s54, s49, 1"); e("s_and_b32 s55, s49, 1"); e("s_lshl2_add_u32 s56, s5, s50" if "rmap" in exp else "s_lshr_b32 s56, s2, 3")
        e("s_lshl_b32 s52, s56, 2"); e("s_lshl_b32 s53, s54, 7"); e("s_add_u32 s52, s52, s53")
        e(f"v_add_lshl_u32 v{vOc}, v{vOc}, s52, 1")
        e("s_lshl_b32 s52, s55, 10"); e(f"v_add_u32 v{vXo}, s52, v{vOc}")
        e(f"s_mul_i32 s52, s54, {64*YS}"); e("s_lshl_b32 s53, s55, 9"); e("s_add_u32 s52, s52, s53"); e("s_lshl4_add_u32 s52, s56, s52"); e(f"s_add_u32 s52, s52, {YP}")
    else:
        if "perm" in exp: e("s_and_b32 s52, s10, 31"); perm()
        else: e("s_and_b32 s52, s10, 15"); e("s_lshl_b32 s52, s52, 1"); e("s_bfe_u32 s53, s10, 0x10004"); e("s_add_u32 s52, s52, s53")
        e("s_lshl_b32 s52, s52, 2"); e("s_lshl_b32 s53, s9, 7"); e("s_add_u32 s52, s52, s53")
        e(f"v_add_lshl_u32 v{vOc}, v{vOc}, s52, 1")
        e("s_lshr_b32 s52, s10, 5"); e("s_lshl_b32 s52, s52, 10"); e(f"v_add_u32 v{vXo}, s52, v{vOc}")
        e(f"s_mul_i32 s52, s9, {64*YS}"); e("s_lshl_b32 s53, s10, 4"); e("s_add_u32 s52, s52, s53"); e(f"s_add_u32 s52, s52, {YP}")
    e(f"v_mul_u32_u24 v{vK}, {YS}, v0"); e(f"v_add_u32 v{vK}, s52, v{vK}"); e(f"v_add_u32 v{T3}, {FP-YP}, v{vK}")
    if "nosmall" not in exp:
        e(f"global_load_ushort v{vB2}, v{vOc}, s[34:35]")
        e(f"global_load_ushort v{vX}, v{vXo}, s[16:17]")
    ldswait("L_pv", VCNT, 4, T0, sleep=vsl)
    WO = 40
    if "woearly" not in exp:
        if "wo23" in exp: e("s_cmp_lg_u32 s59, 0"); e("s_cbranch_scc1 L_wod")
        for u in range(4): e(f"global_load_dwordx4 v[{WO+4*u}:{WO+4*u+3}], v{vWo}, s[24:25] offset:{1024*u} nt")
        a.label("L_wod")
    if "fcom" in exp:
        e("s_cmp_eq_u32 s57, 0"); e("s_cbranch_scc1 L_nfs")
        e(f"global_store_dwordx4 v{vOff2}, v[{QM}:{QM+3}], s[40:41] sc1")
        stamp(3)
        a.label("L_nfs")
    if "ofill" in exp:
        if "ofq" in exp:
            e("s_lshl_b32 s52, s9, 1"); e("s_lshl_b32 exec_lo, 0x0101, s52"); e("s_mov_b32 exec_hi, 0")
        e(f"global_load_dword v{XF}, v{vOff}, s[62:63] sc1 nt"); e(f"global_load_dword v{XF+4}, v{vOff}, s[62:63] offset:512 sc1 nt")
        e("s_mov_b64 exec, -1")
    if "cut" in exp: e("s_waitcnt vmcnt(0)"); e("s_branch L_end")
    if "yfill" in exp:
        e("s_cmp_lg_u32 s3, 5"); e("s_cbranch_scc1 L_nyf")
        e("s_and_b32 s52, s56, 7"); e("s_lshl_b32 s52, s52, 3"); e("s_lshl_b64 exec, 0xff, s52")
        e(f"global_load_dword v{G3}, v{vK}, s[40:41] {YFILL}")
        e("s_mov_b64 exec, -1")
        a.label("L_nyf")
    if "diag" in exp: stamp(1); e("s_waitcnt vmcnt(0)"); stamp(2)
    if "prio" in exp: e("s_setprio 2")
    if "noog" not in exp: ldswait("L_pw", OCNT, og, T0, sleep=0)
    stamp(4)
    O1, O2, S1, S2 = XS, XS + 4, XF, XF + 4
    if osl:
        e("s_movk_i32 s43, 0x3fff"); e("s_branch L_po"); a.label("L_po_s"); e(f"s_sleep {osl}"); a.label("L_po")
        e("s_and_b32 s48, s43, 63"); e("s_cselect_b64 s[60:61], s[62:63], s[40:41]")
    else: pollhead("L_po")
    e(f"global_load_dwordx4 v[{S1}:{S1+3}], v{vOff}, s[60:61] {OF}"); e(f"global_load_dwordx4 v[{S2}:{S2+3}], v{vOff}, s[60:61] offset:512 {OF}")
    e("s_cselect_b32 s42, s96, s97")
    e("s_sub_u32 s43, s43, 1"); e("s_cbranch_scc1 L_end")
    e("s_waitcnt vmcnt(0)")
    if "omask" in exp:
        e(f"v_cmp_ne_u32 vcc, s42, v{S1+3}"); e(f"v_cmp_ne_u32 s[58:59], s42, v{S2+3}")
        e(f"v_max_f32 v{T0}, v{S1+2}, v{S2+2}")
        e("s_or_b64 exec, vcc, s[58:59]")
        e("s_cbranch_scc1 " + ("L_po_s" if osl else "L_po"))
        e("s_mov_b64 exec, -1")
        e(f"v_max_f32_dpp v{T0}, v{T0}, v{T0} {RED8[0]} {FULL}")
        e(f"v_lshlrev_b32 v{O1+2}, 16, v{S1+1}"); e(f"v_and_b32 v{O1+3}, 0xffff0000, v{S1+1}")
    else:
        e(f"v_max_f32 v{T0}, v{S1+2}, v{S2+2}")
        e(f"v_cmp_ne_u32 vcc, s42, v{S1+3}"); e(f"v_cmp_ne_u32 s[58:59], s42, v{S2+3}")
        e(f"v_max_f32_dpp v{T0}, v{T0}, v{T0} {RED8[0]} {FULL}")
        e("s_or_b64 vcc, vcc, s[58:59]")
        e("s_cbranch_scc1 " + ("L_po_s" if osl else "L_po"))
    stamp(5)
    e(f"v_max_f32_dpp v{T0}, v{T0}, v{T0} {RED8[1]} {FULL}")
    e(f"v_lshlrev_b32 v{O1}, 16, v{S1}"); e(f"v_and_b32 v{O1+1}, 0xffff0000, v{S1}")
    e(f"v_max_f32_dpp v{T0}, v{T0}, v{T0} {RED8[2]} {FULL}")
    e(f"v_sub_f32 v{S1+3}, v{S1+2}, v{T0}"); e(f"v_sub_f32 v{S2+3}, v{S2+2}, v{T0}")
    e(f"v_exp_f32 v{S1+3}, v{S1+3}"); e(f"v_exp_f32 v{S2+3}, v{S2+3}")
    if "omask" not in exp: e(f"v_lshlrev_b32 v{O1+2}, 16, v{S1+1}"); e(f"v_and_b32 v{O1+3}, 0xffff0000, v{S1+1}")
    e(f"v_add_f32 v{T0}, v{S1+3}, v{S2+3}")
    e(f"v_lshlrev_b32 v{O2}, 16, v{S2}"); e(f"v_and_b32 v{O2+1}, 0xffff0000, v{S2}")
    e(f"v_add_f32_dpp v{T0}, v{T0}, v{T0} {RED8[0]} {FULL}")
    e(f"v_lshlrev_b32 v{O2+2}, 16, v{S2+1}"); e(f"v_and_b32 v{O2+3}, 0xffff0000, v{S2+1}")
    e(f"v_add_f32_dpp v{T0}, v{T0}, v{T0} {RED8[1]} {FULL}")
    if "pk" in exp:
        e(f"v_pk_mul_f32 v[{O1}:{O1+1}], v[{O1}:{O1+1}], v[{S1+2}:{S1+3}] op_sel:[0,1] op_sel_hi:[1,1]")
        e(f"v_pk_mul_f32 v[{O1+2}:{O1+3}], v[{O1+2}:{O1+3}], v[{S1+2}:{S1+3}] op_sel:[0,1] op_sel_hi:[1,1]")
        e(f"v_add_f32_dpp v{T0}, v{T0}, v{T0} {RED8[2]} {FULL}")
        e(f"v_pk_fma_f32 v[{O1}:{O1+1}], v[{O2}:{O2+1}], v[{S2+2}:{S2+3}], v[{O1}:{O1+1}] op_sel:[0,1,0] op_sel_hi:[1,1,1]")
        e(f"v_rcp_f32 v{T0}, v{T0}")
        e(f"v_pk_fma_f32 v[{O1+2}:{O1+3}], v[{O2+2}:{O2+3}], v[{S2+2}:{S2+3}], v[{O1+2}:{O1+3}] op_sel:[0,1,0] op_sel_hi:[1,1,1]")
        e(f"v_pk_mul_f32 v[{O1}:{O1+1}], v[{O1}:{O1+1}], v[{T0}:{T0+1}] op_sel:[0,0] op_sel_hi:[1,0]")
        e(f"v_pk_mul_f32 v[{O1+2}:{O1+3}], v[{O1+2}:{O1+3}], v[{T0}:{T0+1}] op_sel:[0,0] op_sel_hi:[1,0]")
    else:
        for u in range(2): e(f"v_mul_f32 v{O1+u}, v{O1+u}, v{S1+3}")
        e(f"v_add_f32_dpp v{T0}, v{T0}, v{T0} {RED8[2]} {FULL}")
        for u in range(2, 4): e(f"v_mul_f32 v{O1+u}, v{O1+u}, v{S1+3}")
        e(f"v_rcp_f32 v{T0}, v{T0}")
        for u in range(4): e(f"v_fmac_f32 v{O1+u}, v{O2+u}, v{S2+3}")
        for u in range(4): e(f"v_mul_f32 v{O1+u}, v{O1+u}, v{T0}")
    red8("v_add_f32", [O1, O1 + 1, O1 + 2, O1 + 3])
    for u in range(4): e(f"v_cvt_pk_bf16_f32 v{O1+u}, v{O1+u}, v{O1+u}")
    for u in range(5):
        if u < 4:
            for r in range(4): e(f"v_and_b32 v{A0+4*u+r}, v{O1+u}, v{MM+r}")
        if u >= 1:
            w = u - 1
            e(f"{MF} v[{PD}:{PD+3}], v[{A0+4*w}:{A0+4*w+3}], v[{WO+4*w}:{WO+4*w+3}], " + ("0" if w == 0 else f"v[{PD}:{PD+3}]"))
    e(f"ds_write_b128 v{T2}, v[{PD}:{PD+3}] offset:{LY}")
    e("s_mov_b64 exec, 1"); e(f"ds_add_rtn_u32 v{T0}, v4, v5 offset:{YCNT}")
    if "spec" in exp:
        e("s_mov_b64 exec, -1")
        for w in range(4): e(f"ds_read_b128 v[{W0+4*w}:{W0+4*w+3}], v{vH} offset:{LY+1024*w}")
        e("s_waitcnt lgkmcnt(4)")
        e(f"v_readfirstlane_b32 s48, v{T0}"); e("s_cmp_lg_u32 s48, 3"); e("s_cbranch_scc1 L_end")
    else:
        e("s_waitcnt lgkmcnt(0)")
        e(f"v_cmp_ne_u32 vcc, 3, v{T0}"); e("s_mov_b64 exec, -1"); e("s_cbranch_vccnz L_end")
        for w in range(4): e(f"ds_read_b128 v[{W0+4*w}:{W0+4*w+3}], v{vH if 'perm' in exp else vV} offset:{LY+1024*w}")
    if "pk" in exp:
        e("s_waitcnt lgkmcnt(2)")
        for r in (0, 2): e(f"v_pk_add_f32 v[{W0+r}:{W0+r+1}], v[{W0+r}:{W0+r+1}], v[{W0+4+r}:{W0+5+r}]")
        e("s_waitcnt lgkmcnt(0)")
        for r in (0, 2): e(f"v_pk_add_f32 v[{W0+8+r}:{W0+9+r}], v[{W0+8+r}:{W0+9+r}], v[{W0+12+r}:{W0+13+r}]")
        for r in (0, 2): e(f"v_pk_add_f32 v[{W0+r}:{W0+r+1}], v[{W0+r}:{W0+r+1}], v[{W0+8+r}:{W0+9+r}]")
    else:
        e("s_waitcnt lgkmcnt(2)")
        for r in range(4): e(f"v_add_f32 v{W0+r}, v{W0+r}, v{W0+4+r}")
        e("s_waitcnt lgkmcnt(0)")
        for r in range(4): e(f"v_add_f32 v{W0+8+r}, v{W0+8+r}, v{W0+12+r}")
        for r in range(4): e(f"v_add_f32 v{W0+r}, v{W0+r}, v{W0+8+r}")
    tag4(W0, W0, 84)
    e(f"global_store_dwordx4 v{vGr}, v[{W0}:{W0+3}], s[40:41] {YST}")
    stamp(6)
    def red64(G):
        e(f"v_permlane32_swap_b32 v{G}, v{G+1}"); e(f"v_permlane32_swap_b32 v{G+2}, v{G+3}")
        e(f"v_add_f32 v{G}, v{G}, v{G+1}"); e(f"v_add_f32 v{G+2}, v{G+2}, v{G+3}")
        e(f"v_permlane16_swap_b32 v{G}, v{G+2}"); e(f"v_add_f32 v{G}, v{G}, v{G+2}")
        for n in (8, 4, 2, 1): e(f"v_add_f32_dpp v{G}, v{G}, v{G} row_ror:{n} {FULL}")
    e("s_movk_i32 s43, 0x3fff")
    a.label("L_pf")
    e(f"global_load_dwordx4 v[{G2}:{G2+3}], v{T3}, s[40:41] {FF_}")
    if "fy" in exp:
        if fyd: e(f"s_sleep {fyd}")
        e(f"global_load_dwordx4 v[{G3}:{G3+3}], v{vK}, s[40:41] {YF}")
    e("s_sub_u32 s43, s43, 1"); e("s_cbranch_scc1 L_end")
    e("s_waitcnt vmcnt(1)" if "fy" in exp else "s_waitcnt vmcnt(0)")
    check([G2], T0, 84)
    e("s_cbranch_vccnz L_pf")
    if "fy" not in exp: e(f"global_load_dwordx4 v[{G3}:{G3+3}], v{vK}, s[40:41] {YF}")
    if "diag2" in exp: stamp(1)
    red64(G2)
    e(f"v_lshlrev_b32 v{vB2}, 16, v{vB2}"); e(f"v_lshlrev_b32 v{vX}, 16, v{vX}")
    e(f"v_add_f32 v{vB2}, v{G2}, v{vB2}")
    e(f"v_mul_f32 v{T0}, {f32(-LOG2E)}, v{vB2}"); e(f"v_exp_f32 v{T0}, v{T0}"); e(f"v_add_f32 v{T0}, 1.0, v{T0}")
    e(f"v_rcp_f32 v{T0}, v{T0}"); e("s_movk_i32 s43, 0x3fff"); e(f"v_mul_f32 v{vB2}, v{vB2}, v{T0}")
    if "ymask" in exp:
        GC = W0 + 16
        e("s_branch L_py_in")
        a.label("L_py")
        if ysl: e(f"s_sleep {ysl}")
        e(f"global_load_dwordx4 v[{G3}:{G3+3}], v{vK}, s[40:41] {YF}")
        e("s_sub_u32 s43, s43, 1"); e("s_cbranch_scc1 L_end")
        a.label("L_py_in")
        e("s_waitcnt vmcnt(0)")
        check([G3], T0, 84)
        e("s_and_b64 exec, vcc, vcc")
        e("s_cbranch_scc1 L_py")
        e("s_mov_b64 exec, -1")
    else:
        e("s_branch L_py_in")
        a.label("L_py")
        if ysl: e(f"s_sleep {ysl}")
        e(f"global_load_dwordx4 v[{G3}:{G3+3}], v{vK}, s[40:41] {YF}")
        e("s_sub_u32 s43, s43, 1"); e("s_cbranch_scc1 L_end")
        a.label("L_py_in")
        e("s_waitcnt vmcnt(0)")
        check([G3], T0, 84)
        e("s_cbranch_vccnz L_py")
    if "diag2" in exp:
        stamp(2); e("s_sub_u32 s70, 0x3fff, s43"); e("s_add_u32 s70, s70, s64"); e("s_addc_u32 s71, s65, 0")
    red64(G3)
    e("s_mov_b32 exec_lo, 0x00010001"); e("s_mov_b32 exec_hi, 0x00010001")
    e(f"v_fma_f32 v{G3}, v{G3}, v{vB2}, v{vX}")
    e(f"v_cvt_pk_bf16_f32 v{G3}, v{G3}, v{G3}")
    e(f"global_store_short v{vXo}, v{G3}, s[36:37]" + (" " + OUTF))
    if "fix" in exp:
        if fixx >= 0: e("s_and_b32 s66, s96, 15"); e(f"s_cmp_lg_u32 s66, {fixx}"); e("s_cbranch_scc1 L_nfx")
        a.label("L_fx"); e("s_memrealtime s[66:67]"); e("s_waitcnt lgkmcnt(0)"); e("s_sub_u32 s66, s66, s64"); e("s_cmp_lt_u32 s66, 3000"); e("s_cbranch_scc1 L_fx")
        a.label("L_nfx")
    e("s_cmp_lg_u32 s2, 0"); e("s_cbranch_scc1 L_end")
    e("s_add_u32 s11, s11, 1"); e(f"v_mov_b32 v{T0}, s11"); e("s_mov_b64 exec, 1")
    e(f"global_store_dword v4, v{T0}, s[40:41]" + ("" if "eplain" in exp else " sc1"))
    a.label("L_end")
    if stamps:
        stamp(7)
        e("s_waitcnt lgkmcnt(0)")
        e("s_mov_b32 s48, 3000")
        a.label("L_dly"); e("s_sleep 8"); e("s_sub_u32 s48, s48, 100"); e("s_cbranch_scc0 L_dly")
        e("s_mov_b64 exec, 1")
        e("s_lshl_b32 s48, s2, 3"); e("s_add_u32 s48, s48, s3"); e("s_lshl_b32 s48, s48, 6"); e(f"s_add_u32 s48, s48, {STAMP}")
        e("v_mov_b32 v1, s48")
        for i in range(16): e(f"v_mov_b32 v{8+i}, s{64+i}")
        for i in range(4): e(f"global_store_dwordx4 v1, v[{8+4*i}:{11+4*i}], s[40:41] offset:{16*i}")
    a.label("L_exit")
    a.label("L_last")
    e("s_endpgm")

    body = a.finalize()
    L = [HDR.rstrip(), f"; @launch grid=(256,1,1) block=(512,1,1) lds={LDS}",
         '.amdgcn_target "amdgcn-amd-amdhsa--gfx950"', ".text", f".globl {NAME}_kernel", ".p2align 8",
         f".type {NAME}_kernel,@function", f"{NAME}_kernel:"]
    if stamps: L += [f"s_mov_b64 s[{64+2*i}:{65+2*i}], 0" for i in range(1, 8)] + ["s_nop 0"]
    L += ["    " + x if not x.endswith(":") else x for x in body]
    L += ['.section .rodata,"a"', ".p2align 6", f".amdhsa_kernel {NAME}_kernel",
          f"  .amdhsa_next_free_vgpr {NV}", "  .amdhsa_next_free_sgpr 100", f"  .amdhsa_accum_offset {NV}",
          "  .amdhsa_group_segment_fixed_size 0", "  .amdhsa_kernarg_size 104", "  .amdhsa_user_sgpr_count 2",
          "  .amdhsa_user_sgpr_kernarg_segment_ptr 1", "  .amdhsa_system_sgpr_workgroup_id_x 1", ".end_amdhsa_kernel"]
    return "\n".join(L) + "\n"

if __name__ == "__main__":
    B = ("v0", "pk", "omask", "ymask", "perm", "cmap", "eplain", "yfill", "rmap", "spec", "fcom", "w2mid", "fix")
    D = dict(pw=16, thr0=2, n0=5, QH="sc1 nt", YFILL="sc1", OF="sc1 nt", vsl=1, sched=[(5, 6), (27, 10)], ngo=12, exp=B)
    for i in range(3):
        open(f"kfx0_{i}.s", "w").write(gen(fixx=0, **D)); open(f"kfxa_{i}.s", "w").write(gen(**D))
```
